```python
import torch

def _softmax(x, axis=-1):
    return torch.softmax(x, dim=axis)
def _gelu(x):
    return torch.nn.functional.gelu(x, approximate="tanh")
def _silu(x):
    return torch.nn.functional.silu(x)
def _sigmoid(x):
    return torch.sigmoid(x)
def _layernorm(x, axis=-1, eps=1e-5):
    m = x.mean(dim=axis, keepdim=True)
    v = x.var(dim=axis, keepdim=True, unbiased=False)
    return (x - m) / torch.sqrt(v + eps)
def _scatter_add(tgt, idx, src, axis=0):
    return tgt.clone().index_add_(axis, idx, src)
def _segment_sum(src, seg, n):
    out = torch.zeros((n,) + src.shape[1:], dtype=src.dtype)
    return out.index_add_(0, seg, src)
def _pad(x, pw):
    flat = tuple(v for pair in reversed(pw) for v in pair)
    return torch.nn.functional.pad(x, flat)

kernel_name = 'sequential_preLN__softmax_full_mha__swiglu_ffn__prompt'

def setup_inputs():

    _w = (lambda a: (lambda t: t.to(torch.bfloat16) if t.is_floating_point() else t)(torch.as_tensor(a)))
    def _A_setup():
        B, S, D = 1, 2048, 640
        return {
            "x": _w((lambda *s: torch.randn(*s, dtype=torch.bfloat16) * 0.05)(B, S, D)),
            "wqkv": _w((lambda *s: torch.randn(*s, dtype=torch.bfloat16) * 0.05)(D, 3 * D)),
            "wo": _w((lambda *s: torch.randn(*s, dtype=torch.bfloat16) * 0.05)(D, D)),
        }
    _A_in = _A_setup()

    def _B_setup():
        B, S, D, F = 1, 2048, 640, 1536
        return {
            "x": _w((lambda *s: torch.randn(*s, dtype=torch.bfloat16) * 0.05)(B, S, D)),
            "w_gate": _w((lambda *s: torch.randn(*s, dtype=torch.bfloat16) * 0.05)(D, F)),
            "w_up": _w((lambda *s: torch.randn(*s, dtype=torch.bfloat16) * 0.05)(D, F)),
            "w_down": _w((lambda *s: torch.randn(*s, dtype=torch.bfloat16) * 0.05)(F, D)),
        }
    _B_in = _B_setup()

    return {
        "A_x": _A_in["x"],
        "A_wqkv": _A_in["wqkv"],
        "A_wo": _A_in["wo"],
        "B_x": _B_in["x"],
        "B_w_gate": _B_in["w_gate"],
        "B_w_up": _B_in["w_up"],
        "B_w_down": _B_in["w_down"],
    }

def reference(A_x, A_wqkv, A_wo, B_x, B_w_gate, B_w_up, B_w_down):
    def _A_ref(x, wqkv, wo):
        B, S, D = x.shape
        H = 32; Dh = D // H
        qkv = (lambda x, *d: x.permute(*d))((x @ wqkv).reshape(B, S, 3, H, Dh), 2, 0, 3, 1, 4)
        q, k, v = qkv[0], qkv[1], qkv[2]
        scale = Dh ** -0.5
        scores = torch.einsum("bhqd,bhkd->bhqk", q, k) * scale
        p = _softmax(scores, axis=-1)
        o = torch.einsum("bhqk,bhkd->bhqd", p, v)
        return (lambda x, *d: x.permute(*d))(o, 0, 2, 1, 3).reshape(B, S, D) @ wo

    def _B_ref(x, w_gate, w_up, w_down):
        g = _silu(x @ w_gate)
        u = x @ w_up
        return (g * u) @ w_down

    x = A_x
    h = x + _A_ref(_layernorm(x, axis=-1), A_wqkv, A_wo)
    h2 = h + _B_ref(_layernorm(h, axis=-1), B_w_gate, B_w_up, B_w_down)
    return h2
```

```python
class Asm:
    def __init__(self):
        self.lines = []
        self.uid = 0
    def __call__(self, s=''):
        for l in s.split('\n'):
            l = l.strip()
            if not l: continue
            if l.endswith(':') or l.startswith('.'):
                self.lines.append(l)
            else:
                self.lines.append('    ' + l)
    def c(self, s):
        self.lines.append('    ; ' + s)
    def label(self, base):
        self.uid += 1
        return f'L_{base}_{self.uid}'
    def text(self):
        return '\n'.join(self.lines) + '\n'

def v(n, cnt=1):
    return f'v{n}' if cnt == 1 else f'v[{n}:{n+cnt-1}]'
def s(n, cnt=1):
    return f's{n}' if cnt == 1 else f's[{n}:{n+cnt-1}]'
def a(n, cnt=1):
    return f'a{n}' if cnt == 1 else f'a[{n}:{n+cnt-1}]'

class Alloc:
    def __init__(self, start, limit):
        self.n = start; self.limit = limit; self.hi = start
    def __call__(self, cnt=1, align=None):
        if align is None:
            align = 1 if cnt == 1 else 2
        self.n = (self.n + align - 1) // align * align
        r = self.n
        self.n += cnt
        self.hi = max(self.hi, self.n)
        assert self.n <= self.limit, f'out of registers {self.n} > {self.limit}'
        return r
    def mark(self): return self.n
    def release(self, m): self.n = m

def kernel_header(name):
    return f'''.text
.globl {name}
.p2align 8
.type {name},@function
{name}:
'''

def kernel_desc(name, nvgpr, nsgpr=102, accum=None):
    if accum is None:
        accum = (nvgpr + 3) // 4 * 4
    return f'''.section .rodata,"a"
.p2align 6
.amdhsa_kernel {name}
  .amdhsa_next_free_vgpr {nvgpr}
  .amdhsa_next_free_sgpr {nsgpr}
  .amdhsa_accum_offset {accum}
  .amdhsa_group_segment_fixed_size 0
  .amdhsa_kernarg_size 80
  .amdhsa_user_sgpr_count 2
  .amdhsa_user_sgpr_kernarg_segment_ptr 1
  .amdhsa_system_sgpr_workgroup_id_x 1
  .amdhsa_float_denorm_mode_32 3
.end_amdhsa_kernel
'''

def srd(A, dst, base, nbytes):
    if dst != base:
        A(f's_mov_b32 s{dst}, s{base}')
    A(f's_and_b32 s{dst+1}, s{base+1}, 0xffff')
    A(f's_mov_b32 s{dst+2}, {nbytes:#x}')
    A(f's_mov_b32 s{dst+3}, 0x20000')

def interleave(mains, fillers, per=None):
    out = []
    n = len(mains); m = len(fillers); k = 0
    for i, x in enumerate(mains):
        out.append(x)
        tgt = (m * (i + 1) + n - 1) // n if per is None else min(m, per * (i + 1))
        while k < tgt:
            out.append(fillers[k]); k += 1
    out += fillers[k:]
    return out
```

```python
import sys, math, struct
from dsl import *

NAME = 'sequential_preLN__softmax_full_mha__swiglu_ffn__prompt'
PROF = '--prof' in sys.argv

WS_Q   = 0x0000000
WS_KV  = 0x0280000
WS_O   = 0x0780000
WS_H   = 0x0A00000
WS_ACT = 0x0C80000
WS_WO  = 0x1280000
WS_WGU = 0x1350000
WS_WD  = 0x1710000
WS_CS  = 0x18F0000
WS_ST  = 0x1900000
WS_PROF= 0x1A00000
WS_SIZE= 0x2000000

def f2u(x): return struct.unpack('<I', struct.pack('<f', x))[0]
QSCALE = (20 ** -0.5) * math.log2(math.e)
ONES = 0x3f803f80

def div_magic(A, dst, src, d):
    m, sh = {5: (52429, 18), 10: (52429, 19), 6: (43691, 18), 48: (43691, 21), 20: (52429, 20)}[d]
    A(f's_mul_i32 s{dst}, s{src}, {m}')
    A(f's_lshr_b32 s{dst}, s{dst}, {sh}')

def stamp(A, kid, pt, sws, vt, cond_wave=None):
    if not PROF: return
    A(f's_memrealtime s[96:97]')
    A(f's_lshl_b32 s98, s2, 2')
    A(f's_add_u32 s98, s98, {WS_PROF + (kid*8+pt)*1024}')
    A(f's_waitcnt lgkmcnt(0)')
    A(f'v_mov_b32 v{vt}, s96')
    A(f'v_mov_b32 v{vt+1}, 0')
    A(f'buffer_store_dword v{vt}, v{vt+1}, s[{sws}:{sws+3}], s98 offen')

def gen_prep():
    A = Asm()
    name = 'prep_kernel'
    A(kernel_header(name))
    SW, SA, SB = 16, 20, 24
    A('s_cmp_ge_u32 s2, 188')
    A('s_cbranch_scc1 prep_done')
    A('s_load_dwordx2 s[4:5], s[0:1], 16')
    A('s_load_dwordx4 s[8:11], s[0:1], 32')
    A('s_load_dwordx2 s[12:13], s[0:1], 48')
    A('s_load_dwordx2 s[16:17], s[0:1], 72')
    A('v_lshrrev_b32 v1, 6, v0')
    A('v_and_b32 v2, 63, v0')
    A('v_readfirstlane_b32 s3, v1')
    A('s_waitcnt lgkmcnt(0)')
    srd(A, SW, 16, WS_SIZE)
    A('v_and_b32 v3, 3, v2')
    A('v_bfe_u32 v4, v2, 2, 2')
    A('v_lshrrev_b32 v5, 4, v2')
    A('s_mul_i32 s30, s3, 5120')
    A('s_cmp_ge_u32 s2, 120')
    A('s_cbranch_scc1 prep_sk')
    div_magic(A, 31, 2, 5)
    A('s_mul_i32 s32, s31, 5')
    A('s_sub_u32 s32, s2, s32')
    A('s_lshl_b32 s33, s32, 3')
    A('s_add_u32 s33, s33, s3')
    srd(A, SA, 8, 640*1536*2)
    srd(A, SB, 10, 640*1536*2)
    A('v_lshrrev_b32 v6, 3, v2')
    A('v_mul_u32_u24 v6, 3072, v6')
    A('v_and_b32 v7, 7, v2')
    A('v_lshl_add_u32 v6, v7, 4, v6')
    A('s_mul_i32 s34, s33, 49152')
    A('s_lshl_b32 s35, s31, 7')
    A('s_add_u32 s34, s34, s35')
    A(f's_add_u32 s35, s34, {8*3072 - 1024}')
    A('s_mov_b32 m0, s30')
    A('s_nop 0')
    A(f'buffer_load_dwordx4 v6, s[{SA}:{SA+3}], s34 offen lds')
    A(f'buffer_load_dwordx4 v6, s[{SA}:{SA+3}], s35 offen offset:1024 lds')
    A('s_add_u32 s36, s30, 2048')
    A('s_mov_b32 m0, s36')
    A('s_nop 0')
    A(f'buffer_load_dwordx4 v6, s[{SB}:{SB+3}], s34 offen lds')
    A(f'buffer_load_dwordx4 v6, s[{SB}:{SB+3}], s35 offen offset:1024 lds')
    A('v_and_b32 v7, 1, v5')
    A('v_lshrrev_b32 v8, 1, v5')
    A('v_lshl_add_u32 v8, v8, 3, v4')
    A('v_lshlrev_b32 v8, 7, v8')
    A('v_lshl_add_u32 v8, v7, 11, v8')
    A('v_lshl_add_u32 v8, v3, 3, v8')
    A('v_add_u32 v8, s30, v8')
    A('v_lshlrev_b32 v9, 4, v2')
    A('s_waitcnt vmcnt(0)')
    for m in range(4):
        A(f'ds_read_b64_tr_b16 v[{16+4*m}:{17+4*m}], v8 offset:{32*m}')
        A(f'ds_read_b64_tr_b16 v[{18+4*m}:{19+4*m}], v8 offset:{32*m+512}')
    A(f'v_mov_b32 v10, {ONES:#x}')
    A('s_waitcnt lgkmcnt(0)')
    for m in range(4):
        A('s_lshl_b32 s36, s31, 2')
        A(f's_add_u32 s36, s36, {m}')
        div_magic(A, 37, 36, 6)
        A('s_mul_i32 s38, s37, 6')
        A('s_sub_u32 s38, s36, s38')
        A('s_mul_i32 s37, s37, 40')
        A('s_add_u32 s37, s37, s33')
        A('s_mul_i32 s37, s37, 6')
        A('s_add_u32 s37, s37, s38')
        A('s_lshl_b32 s37, s37, 10')
        A(f's_add_u32 s37, s37, {WS_WGU}')
        A(f'buffer_store_dwordx4 v[{16+4*m}:{19+4*m}], v9, s[{SW}:{SW+3}], s37 offen')
        A(f'v_dot2_f32_bf16 v{32+m}, v{16+4*m}, v10, 0')
        for j in range(1, 4):
            A(f'v_dot2_f32_bf16 v{32+m}, v{16+4*m+j}, v10, v{32+m}')
    A('s_lshl_b32 s36, s3, 10')
    A('s_add_u32 s36, s36, 40960')
    A('v_lshlrev_b32 v11, 2, v2')
    A('v_add_u32 v11, s36, v11')
    A('s_nop 1')
    for m in range(4):
        A(f'ds_write_b32 v11, v{32+m} offset:{256*m}')
    A('s_waitcnt lgkmcnt(0)')
    A('s_barrier')
    A('s_cmp_ge_u32 s3, 2')
    A('s_cbranch_scc1 prep_done')
    A('v_lshrrev_b32 v12, 5, v0')
    A('v_and_b32 v13, 31, v0')
    A('v_lshlrev_b32 v12, 8, v12')
    A('v_lshl_add_u32 v12, v13, 2, v12')
    A('v_add_u32 v14, 40960, v12')
    for w in range(8):
        for h in range(2):
            A(f'ds_read_b32 v{16+2*w+h}, v14 offset:{1024*w+128*h}')
        if w == 3: A('s_waitcnt lgkmcnt(4)')
    A('s_waitcnt lgkmcnt(0)')
    for i in range(1, 16):
        A(f'v_add_f32 v16, v16, v{16+i}')
    A('s_mul_i32 s36, s32, 12288')
    A('s_lshl_b32 s37, s31, 9')
    A('s_add_u32 s36, s36, s37')
    A(f's_add_u32 s36, s36, {WS_CS}')
    A('v_lshlrev_b32 v15, 2, v0')
    A(f'buffer_store_dword v16, v15, s[{SW}:{SW+3}], s36 offen')
    A('s_branch prep_done')
    A('prep_sk:')
    for j in range(5):
        A(f'v_add_u32 v6, {64*j}, v2')
        A(f'v_mul_u32_u24 v{40+j}, 6554, v6')
        A(f'v_lshrrev_b32 v{40+j}, 16, v{40+j}')
        A(f'v_mul_u32_u24 v7, 10, v{40+j}')
        A(f'v_sub_u32 v{48+j}, v6, v7')
    A('s_cmp_ge_u32 s2, 168')
    A('s_cbranch_scc1 prep_wo')
    A('s_sub_u32 s31, s2, 120')
    A('s_lshl_b32 s31, s31, 3')
    A('s_add_u32 s31, s31, s3')
    div_magic(A, 32, 31, 48)
    A('s_mul_i32 s33, s32, 48')
    A('s_sub_u32 s33, s31, s33')
    srd(A, SA, 12, 1536*640*2)
    A('s_mul_i32 s34, s31, 5120')
    A(f's_add_u32 s34, s34, {WS_WD}')
    A('s_lshl_b32 s35, s33, 5')
    for j in range(5):
        A(f'v_add_u32 v{40+j}, s35, v{40+j}')
    A('s_branch prep_sk2')
    A('prep_wo:')
    A('s_sub_u32 s31, s2, 168')
    A('s_lshl_b32 s31, s31, 3')
    A('s_add_u32 s31, s31, s3')
    div_magic(A, 32, 31, 20)
    A('s_mul_i32 s33, s32, 20')
    A('s_sub_u32 s33, s31, s33')
    srd(A, SA, 4, 640*640*2)
    A('s_mul_i32 s34, s31, 5120')
    A(f's_add_u32 s34, s34, {WS_WO}')
    A('s_cmp_ge_u32 s33, 16')
    A('s_cbranch_scc1 prep_wo_rem')
    A('s_mul_i32 s35, s33, 40')
    for j in range(5):
        A(f'v_lshrrev_b32 v6, 4, v{40+j}')
        A(f'v_lshl_add_u32 v{40+j}, v6, 2, v{40+j}')
        A(f'v_add_u32 v{40+j}, s35, v{40+j}')
    A('s_branch prep_sk2')
    A('prep_wo_rem:')
    A('s_sub_u32 s35, s33, 16')
    A('s_mul_i32 s35, s35, 160')
    A('s_add_u32 s35, s35, 16')
    for j in range(5):
        A(f'v_bfe_u32 v6, v{40+j}, 4, 1')
        A(f'v_bfe_u32 v7, v{40+j}, 2, 1')
        A(f'v_lshl_add_u32 v6, v6, 1, v7')
        A(f'v_bfe_u32 v7, v{40+j}, 3, 1')
        A(f'v_lshl_add_u32 v6, v6, 1, v7')
        A(f'v_mul_u32_u24 v6, 20, v6')
        A(f'v_and_b32 v7, 3, v{40+j}')
        A(f'v_add3_u32 v{40+j}, v6, v7, s35')
    A('prep_sk2:')
    A('s_mul_i32 s35, s32, 160')
    for j in range(5):
        A(f'v_mul_u32_u24 v{40+j}, 1280, v{40+j}')
        A(f'v_lshl_add_u32 v{40+j}, v{48+j}, 4, v{40+j}')
    for j in range(5):
        A(f's_add_u32 s36, s30, {1024*j}')
        A('s_mov_b32 m0, s36')
        A('s_nop 0')
        A(f'buffer_load_dwordx4 v{40+j}, s[{SA}:{SA+3}], s35 offen lds')
    A('v_lshrrev_b32 v6, 1, v5')
    A('v_and_b32 v7, 1, v5')
    A('v_lshl_add_u32 v6, v6, 2, v7')
    A('v_lshl_add_u32 v6, v6, 2, v4')
    A('v_mul_u32_u24 v6, 160, v6')
    A('v_add_u32 v6, s30, v6')
    A('v_lshl_add_u32 v8, v3, 4, v6')
    A('v_lshl_add_u32 v7, v3, 3, v6')
    A('v_lshlrev_b32 v9, 4, v2')
    A('s_waitcnt vmcnt(0)')
    for F in range(5):
        ar, co = ('v8', 64*(F//2) + 8*(F%2)) if F < 4 else ('v7', 128)
        A(f'ds_read_b64_tr_b16 v[{16+4*F}:{17+4*F}], {ar} offset:{co}')
        A(f'ds_read_b64_tr_b16 v[{18+4*F}:{19+4*F}], {ar} offset:{co+1280}')
    A('s_add_u32 s36, s34, 4096')
    A('s_waitcnt lgkmcnt(0)')
    for F in range(4):
        A(f'buffer_store_dwordx4 v[{16+4*F}:{19+4*F}], v9, s[{SW}:{SW+3}], s34 offen offset:{1024*F}')
    A(f'buffer_store_dwordx4 v[32:35], v9, s[{SW}:{SW+3}], s36 offen')
    A('prep_done:')
    A('s_endpgm')
    return name, A.text(), kernel_desc(name, 64), (256, 512, 49152)

def split_hilo(A, src, hi, lo, t):
    A(f'v_and_b32 v{hi}, 0xffff0000, v{src}')
    A(f'v_sub_f32 v{lo}, v{src}, v{hi}')

def ln_stats(A, s1, s2, mean, rstd, t):
    A(f'v_mul_f32 v{mean}, {f2u(1/640):#x}, v{s1}')
    A(f'v_mul_f32 v{t}, v{mean}, v{mean}')
    A(f'v_mul_f32 v{rstd}, {f2u(1/640):#x}, v{s2}')
    A(f'v_sub_f32 v{rstd}, v{rstd}, v{t}')
    A(f'v_max_f32 v{rstd}, 0, v{rstd}')
    A(f'v_add_f32 v{rstd}, {f2u(1e-5):#x}, v{rstd}')
    A(f'v_rsq_f32 v{rstd}, v{rstd}')

def ext_tok(A, mean, dst, t0, t1, hmask):
    A(f'v_sub_f32 v{t0}, 0, v{mean}')
    A(f'v_cndmask_b32_e64 v{t0}, 0, v{t0}, s[{hmask}:{hmask+1}]')
    A(f'v_and_b32 v{t1}, 0xffff0000, v{t0}')
    A(f'v_sub_f32 v{t0}, v{t0}, v{t1}')
    A(f'v_cvt_pk_bf16_f32 v{dst}, v{t1}, v{t1}')
    A(f'v_cvt_pk_bf16_f32 v{dst+1}, v{t0}, v{t0}')

def ext_feat(A, cs, dst, t0, t1):
    A(f'v_and_b32 v{t1}, 0xffff0000, v{cs}')
    A(f'v_sub_f32 v{t0}, v{cs}, v{t1}')
    A(f'v_cvt_pk_bf16_f32 v{dst}, v{t1}, v{t0}')
    A(f'v_mov_b32 v{dst+1}, v{dst}')

def gen_qkv():
    A = Asm()
    name = 'qkv_kernel'
    A(kernel_header(name))
    SX, SWT, SW = 16, 20, 24
    NS = 4; STG = 32768; NST = 10
    LST = NS * STG
    A('s_cmp_ge_u32 s2, 240')
    A('s_cbranch_scc1 qkv_done')
    A('s_load_dwordx4 s[4:7], s[0:1], 0')
    A('s_load_dwordx2 s[24:25], s[0:1], 72')
    A('v_lshrrev_b32 v1, 6, v0')
    A('v_and_b32 v2, 63, v0')
    A('v_readfirstlane_b32 s3, v1')
    A('s_and_b32 s8, s2, 7')
    A('s_lshr_b32 s9, s2, 3')
    A('s_lshr_b32 s10, s8, 1')
    A('s_and_b32 s11, s8, 1')
    A('s_lshl_b32 s30, s10, 2')
    A('s_lshr_b32 s31, s9, 2')
    A('s_lshl_b32 s12, s11, 3')
    A('s_add_u32 s31, s31, s12')
    A('s_and_b32 s12, s9, 3')
    A('s_lshl_b32 s13, s11, 1')
    A('s_add_u32 s13, s13, s12')
    A('s_cmp_ge_u32 s9, 28')
    A('s_cselect_b32 s31, 7, s31')
    A('s_cselect_b32 s12, s13, s12')
    A('s_add_u32 s30, s30, s12')
    A('s_waitcnt lgkmcnt(0)')
    srd(A, SX, 4, 2048*640*2)
    srd(A, SWT, 6, 640*1920*2)
    srd(A, SW, 24, WS_SIZE)
    A('s_cmp_lt_u32 s3, 4')
    A('s_cbranch_scc1 qkv_compute')
    A('s_sub_u32 s32, s3, 4')
    A('s_lshl_b32 s33, s30, 7')
    A('s_lshl_b32 s34, s32, 5')
    A('s_add_u32 s33, s33, s34')
    A('v_lshrrev_b32 v3, 3, v2')
    A('v_lshrrev_b32 v4, 4, v2')
    A('v_and_b32 v5, 7, v2')
    for j in range(4):
        A(f'v_add_u32 v6, {8*j}, v3')
        A('v_add_u32 v6, s33, v6')
        A('v_mul_u32_u24 v6, 1280, v6')
        A(f'v_add_u32 v7, {(4*j)&7}, v4')
        A('v_xor_b32 v7, v5, v7')
        A(f'v_lshl_add_u32 v{10+j}, v7, 4, v6')
        if j: A(f'v_subrev_u32 v{10+j}, {1024*j}, v{10+j}')
    A('s_lshl_b32 s34, s32, 4')
    A('s_lshl_b32 s35, s31, 8')
    A('v_and_b32 v5, 15, v2')
    A('v_lshlrev_b32 v7, 2, v4')
    A('v_xor_b32 v5, v5, v7')
    A('v_lshlrev_b32 v5, 4, v5')
    A('v_add_u32 v5, s35, v5')
    for j in range(4):
        A(f'v_add_u32 v6, {4*j}, v4')
        A('v_add_u32 v6, s34, v6')
        A('v_mul_u32_u24 v6, 3840, v6')
        A(f'v_add_u32 v{14+j}, v5, v6')
        if j: A(f'v_subrev_u32 v{14+j}, {1024*j}, v{14+j}')
    A('s_lshl_b32 s36, s32, 12')
    A('s_mov_b32 s37, 0')
    A('s_mov_b32 s38, 0')
    def issue(slot):
        A(f's_add_u32 s39, s36, {slot*STG}')
        A('s_mov_b32 m0, s39')
        A(f's_add_u32 s39, s36, {slot*STG+16384}')
        for j in range(4):
            A(f'buffer_load_dwordx4 v{10+j}, s[{SX}:{SX+3}], s37 offen offset:{1024*j} lds')
        A('s_mov_b32 m0, s39')
        A('s_add_u32 s37, s37, 128')
        for j in range(4):
            A(f'buffer_load_dwordx4 v{14+j}, s[{SWT}:{SWT+3}], s38 offen offset:{1024*j} lds')
        A(f's_add_u32 s38, s38, {64*3840}')
    for st in range(NS): issue(st)
    for st in range(NST):
        issued = min(NST, NS + max(0, st - 1))
        A(f's_waitcnt vmcnt({8*(issued - st - 1)})')
        A('s_barrier')
        if st >= 1 and st + NS - 1 < NST:
            issue((st - 1) % NS)
    A('s_endpgm')

    A('qkv_compute:')
    R = Alloc(8, 256)
    vA = [[R() for _ in range(4)] for _ in range(2)]
    vB = [R() for _ in range(2)]
    vSt = [R() for _ in range(8)]
    sx = R(2); sxx = sx + 1; cs, ones = R(), R()
    X = [[R(4, 4) for _ in range(2)] for _ in range(2)]
    W = [[R(4, 4) for _ in range(2)] for _ in range(2)]
    acc = [[R(16, 4) for _ in range(2)] for _ in range(2)]
    T = R(40, 4)
    stamp(A, 1, 0, SW, T)
    A('s_and_b32 s32, s3, 1')
    A('s_lshr_b32 s33, s3, 1')
    A('v_and_b32 v3, 31, v2')
    A('v_lshrrev_b32 v4, 5, v2')
    A('v_bfe_u32 v5, v2, 1, 3')
    A('v_xor_b32 v5, v4, v5')
    A('v_lshlrev_b32 v5, 4, v5')
    A('v_lshl_add_u32 v5, v3, 7, v5')
    A('s_lshl_b32 s34, s32, 1')
    A('s_add_u32 s44, s34, s33')
    A('s_xor_b32 s45, s44, 1')
    A('s_lshl_b32 s34, s33, 1')
    A('s_add_u32 s46, s34, s32')
    A('s_xor_b32 s47, s46, 1')
    for tt in range(2):
        A(f's_lshl_b32 s34, s{44+tt}, 12')
        A(f'v_add_u32 v{vA[tt][0]}, s34, v5')
        for s_ in range(1, 4):
            A(f'v_xor_b32 v{vA[tt][s_]}, {32*s_}, v{vA[tt][0]}')
    A('v_bfe_u32 v5, v2, 2, 2')
    A('v_lshl_add_u32 v6, v4, 3, v5')
    A('v_lshlrev_b32 v6, 8, v6')
    A('v_bfe_u32 v7, v2, 4, 1')
    A('v_lshl_add_u32 v6, v7, 5, v6')
    A('v_and_b32 v7, 3, v2')
    A('v_lshl_add_u32 v6, v7, 3, v6')
    A('v_add_u32 v6, 16384, v6')
    for ft in range(2):
        A(f'v_xor_b32 v7, s{46+ft}, v5')
        A(f'v_lshl_add_u32 v{vB[ft]}, v7, 6, v6')
    A(f'v_mov_b32 v{sx}, 0'); A(f'v_mov_b32 v{sxx}, 0'); A(f'v_mov_b32 v{cs}, 0')
    A(f'v_mov_b32 v{ones}, {ONES:#x}')
    for i in range(64): A(f'v_mov_b32 v{acc[0][0]+i}, 0')
    A('s_mov_b32 s40, -1'); A('s_mov_b32 s41, 0')
    A('s_lshl_b32 s42, s30, 2')
    A('s_cmp_ge_u32 s31, 10')
    A('s_cbranch_scc1 qkv_vpath')

    def reads(buf, slot, s_):
        o = (slot & 1) * STG
        r = []
        for tt in range(2):
            r.append(f'ds_read_b128 {v(X[buf][tt],4)}, v{vA[tt][s_]} offset:{o}')
        for ft in range(2):
            for jh in range(2):
                r.append(f'ds_read_b64_tr_b16 {v(W[buf][ft]+2*jh,2)}, v{vB[ft]} offset:{o + s_*4096 + jh*1024}')
        return r
    def mfmas(buf, vpath):
        r = []
        for tt in range(2):
            for ft in range(2):
                a_, b_ = (X[buf][tt], W[buf][ft]) if vpath else (W[buf][ft], X[buf][tt])
                r.append(f'v_mfma_f32_32x32x16_bf16 {v(acc[tt][ft],16)}, {v(a_,4)}, {v(b_,4)}, {v(acc[tt][ft],16)}')
        return r
    def mainloop(vpath, tag):
        A('s_mov_b32 s48, 5')
        A('s_barrier')
        stamp(A, 1, 1, SW, T)
        for x in reads(0, 0, 0): A(x)
        A(f'qkv_loop_{tag}:')
        for st in range(2):
            for s_ in range(4):
                buf = s_ & 1
                A('s_waitcnt lgkmcnt(0)')
                fill = []
                if s_ == 3:
                    A('s_barrier')
                    if st == 1:
                        fill += [f'v_xor_b32 v{r_}, 0x10000, v{r_}' for r_ in [vA[0][0], vA[1][0]] + vB]
                    fill += reads(buf ^ 1, st + 1, 0)
                    if st == 1:
                        fill += [f'v_xor_b32 v{r_}, 0x10000, v{r_}' for r_ in vA[0][1:] + vA[1][1:]]
                else:
                    fill += reads(buf ^ 1, st, s_ + 1)
                for x in interleave(mfmas(buf, vpath), fill): A(x)
                for j in range(4):
                    A(f'v_dot2_f32_bf16 v{sx}, v{X[buf][0]+j}, v{ones}, v{sx}')
                    A(f'v_dot2_f32_bf16 v{sxx}, v{X[buf][0]+j}, v{X[buf][0]+j}, v{sxx}')
                    A(f'v_dot2_f32_bf16 v{cs}, v{W[buf][0]+j}, v{ones}, v{cs}')
        A('s_sub_u32 s48, s48, 1')
        A('s_cmp_lg_u32 s48, 0')
        A(f's_cbranch_scc1 qkv_loop_{tag}')
        stamp(A, 1, 2, SW, T)
    mean = [T+0, T+1]; rstd = [T+2, T+3]; csf = [T+4, T+5]
    EX = [T+8, T+10]; EW = [T+12, T+14]
    def stats_exchange(vpath):
        A('s_lshl_b32 s34, s44, 9')
        A(f's_add_u32 s34, s34, {LST}')
        A('v_lshlrev_b32 v5, 4, v3')
        A('v_lshl_add_u32 v6, v4, 3, v5')
        A('v_add_u32 v6, s34, v6')
        A(f'ds_write_b64 v6, v[{sx}:{sx+1}]')
        A('s_lshl_b32 s34, s46, 8')
        A(f's_add_u32 s34, s34, {LST+2048}')
        A('v_lshlrev_b32 v7, 3, v3')
        A('v_lshl_add_u32 v6, v4, 2, v7')
        A('v_add_u32 v6, s34, v6')
        A(f'ds_write_b32 v6, v{cs}')
        A('s_waitcnt lgkmcnt(0)')
        A('s_barrier')
        for tt in range(2):
            A(f's_lshl_b32 s34, s{44+tt}, 9')
            A(f's_add_u32 s34, s34, {LST}')
            A('v_add_u32 v6, s34, v5')
            A(f'ds_read_b128 {v(T+16+4*tt,4)}, v6')
        for ft in range(2):
            A(f's_lshl_b32 s34, s{46+ft}, 8')
            A(f's_add_u32 s34, s34, {LST+2048}')
            A('v_add_u32 v6, s34, v7')
            A(f'ds_read_b64 {v(T+24+2*ft,2)}, v6')
        A('s_waitcnt lgkmcnt(0)')
        for tt in range(2):
            b = T+16+4*tt
            A(f'v_add_f32 v{b}, v{b}, v{b+2}')
            A(f'v_add_f32 v{b+1}, v{b+1}, v{b+3}')
            ln_stats(A, b, b+1, mean[tt], rstd[tt], b+2)
            ext_tok(A, mean[tt], EX[tt], b+2, b+3, 40)
        for ft in range(2):
            b = T+24+2*ft
            A(f'v_add_f32 v{csf[ft]}, v{b}, v{b+1}')
            ext_feat(A, csf[ft], EW[ft], b, b+1)
        A('s_nop 1')
        for tt in range(2):
            for ft in range(2):
                a_, b_ = (EX[tt], EW[ft]) if vpath else (EW[ft], EX[tt])
                A(f'v_mfma_f32_32x32x8bf16_1k {v(acc[tt][ft],16)}, {v(a_,2)}, {v(b_,2)}, {v(acc[tt][ft],16)}')

    A('s_cmp_ge_u32 s31, 5')
    A('s_cselect_b32 s34, 5, 0')
    A('s_mov_b32 s35, 81920'); A('s_cmov_b32 s35, 163840')
    A('s_mov_b32 s36, 1280'); A('s_cmov_b32 s36, 2560')
    A(f's_cselect_b32 s37, {WS_KV}, {WS_Q}')
    A(f's_cselect_b32 s49, {f2u(1.0):#x}, {f2u(QSCALE):#x}')
    A('s_sub_u32 s34, s31, s34')
    A('s_lshl_b32 s34, s34, 5')
    for ft in range(2):
        A(f's_lshl_b32 s38, s{46+ft}, 3')
        A('s_add_u32 s38, s38, s34')
        for q in range(4):
            d = vSt[ft*4+q]
            A(f'v_add_u32 v5, {2*q}, v4')
            A('v_add_u32 v5, s38, v5')
            A('v_mul_u32_u24 v6, 205, v5')
            A('v_lshrrev_b32 v6, 10, v6')
            A('v_mul_u32_u24 v7, 5, v6')
            A('v_sub_u32 v5, v5, v7')
            A('v_mul_lo_u32 v6, v6, s35')
            A('v_lshl_add_u32 v6, v5, 8, v6')
            A(f'v_lshl_add_u32 v{d}, v3, 3, v6')
    for tt in range(2):
        A(f's_add_u32 s38, s42, s{44+tt}')
        A('s_mul_i32 s38, s38, s36')
        A(f's_add_u32 s{50+tt}, s38, s37')
    mainloop(False, 'qk')
    stats_exchange(False)
    for tt in range(2):
        A(f'v_mul_f32 v{rstd[tt]}, s49, v{rstd[tt]}')
    A('s_nop 7')
    k = 0
    for tt in range(2):
        for ft in range(2):
            for q in range(4):
                b = acc[tt][ft] + 4*q
                for i in range(4): A(f'v_mul_f32 v{b+i}, v{rstd[tt]}, v{b+i}')
                d = T + 16 + 2*(k % 8); k += 1
                A(f'v_cvt_pk_bf16_f32 v{d}, v{b}, v{b+1}')
                A(f'v_cvt_pk_bf16_f32 v{d+1}, v{b+2}, v{b+3}')
                A(f'buffer_store_dwordx2 {v(d,2)}, v{vSt[ft*4+q]}, s[{SW}:{SW+3}], s{50+tt} offen')
    stamp(A, 1, 3, SW, T)
    A('s_endpgm')
    A('qkv_vpath:')
    A('s_sub_u32 s34, s31, 10')
    A('s_lshl_b32 s34, s34, 7')
    A('s_mov_b32 s35, 163840')
    for ft in range(2):
        A(f's_lshl_b32 s38, s{46+ft}, 5')
        A('s_add_u32 s38, s38, s34')
        A('v_add_u32 v5, s38, v3')
        A('v_mul_u32_u24 v6, 3277, v5')
        A('v_lshrrev_b32 v6, 16, v6')
        A('v_mul_u32_u24 v7, 20, v6')
        A('v_sub_u32 v5, v5, v7')
        A('v_mul_lo_u32 v6, v6, s35')
        A('v_lshl_add_u32 v6, v5, 4, v6')
        A('v_mul_u32_u24 v7, 320, v4')
        A(f'v_add_u32 v{vSt[ft]}, v6, v7')
    for tt in range(2):
        A(f's_add_u32 s38, s42, s{44+tt}')
        A('s_mul_i32 s38, s38, 2560')
        A(f's_add_u32 s{50+tt}, s38, {WS_KV+1280}')
    mainloop(True, 'v')
    stats_exchange(True)
    A('s_lshl_b32 s34, s3, 8')
    A(f's_add_u32 s34, s34, {LST+3072}')
    A('v_lshlrev_b32 v5, 2, v3')
    A('v_add_u32 v5, s34, v5')
    A(f'ds_write_b32 v5, v{rstd[0]}')
    A(f'ds_write_b32 v5, v{rstd[1]} offset:128')
    A('v_lshlrev_b32 v5, 4, v4')
    A('v_add_u32 v5, s34, v5')
    RS = X[0][0]
    for tt in range(2):
        for q in range(4):
            A(f'ds_read_b128 {v(RS+16*tt+4*q,4)}, v5 offset:{128*tt+32*q}')
    A('s_waitcnt lgkmcnt(0)')
    A('s_nop 7')
    k = 0
    for tt in range(2):
        for ft in range(2):
            for m in range(2):
                b = acc[tt][ft] + 8*m
                for i in range(8): A(f'v_mul_f32 v{b+i}, v{RS+16*tt+8*m+i}, v{b+i}')
                d = T + 16 + 4*(k % 4); k += 1
                for i in range(4): A(f'v_cvt_pk_bf16_f32 v{d+i}, v{b+2*i}, v{b+2*i+1}')
                A(f'buffer_store_dwordx4 {v(d,4)}, v{vSt[ft]}, s[{SW}:{SW+3}], s{50+tt} offen offset:{640*m}')
    stamp(A, 1, 3, SW, T)
    A('qkv_done:')
    A('s_endpgm')
    return name, A.text(), kernel_desc(name, R.hi), (240, 512, LST + 4096)

def gen_att():
    A = Asm()
    name = 'att_kernel'
    A(kernel_header(name))
    SW = 16
    SLOT = 32768; XCH = 65536
    R = Alloc(8, 256)
    Q16 = [R(4, 4) for _ in range(2)]; Q8 = [R(2) for _ in range(2)]
    C = [R(16, 4) for _ in range(2)]
    S = [R(16, 4) for _ in range(2)]
    P = [R(8, 4) for _ in range(2)]
    O = [R(16, 4) for _ in range(2)]
    K16 = [R(4, 4) for _ in range(2)]; K8 = [R(2) for _ in range(2)]
    V = [R(8, 4) for _ in range(2)]
    aK, aK8, aV, vL16 = R(), R(), R(), R()
    T = R(8, 4)
    A('s_cmp_ge_u32 s2, 256')
    A('s_cbranch_scc1 att_done')
    A('s_load_dwordx2 s[16:17], s[0:1], 72')
    A('v_lshrrev_b32 v1, 6, v0')
    A('v_and_b32 v2, 63, v0')
    A('v_readfirstlane_b32 s3, v1')
    A('s_and_b32 s8, s2, 7')
    A('s_lshr_b32 s9, s2, 3')
    A('s_lshl_b32 s30, s8, 2')
    A('s_and_b32 s10, s9, 3')
    A('s_add_u32 s30, s30, s10')
    A('s_lshr_b32 s31, s9, 2')
    A('s_and_b32 s32, s3, 3')
    A('s_lshr_b32 s33, s3, 2')
    A('s_lshl_b32 s34, s31, 3')
    A('s_lshl_b32 s35, s32, 1')
    A('s_add_u32 s34, s34, s35')
    A('v_and_b32 v3, 31, v2')
    A('v_lshrrev_b32 v4, 5, v2')
    A(f'v_lshlrev_b32 v{vL16}, 4, v2')
    A('s_mov_b32 s40, -1'); A('s_mov_b32 s41, 0')
    A('s_mov_b32 s42, 0xfffff'); A('s_mov_b32 s43, 0xfffff')
    A('s_mul_i32 s36, s30, 163840')
    A(f's_add_u32 s36, s36, {WS_KV}')
    A('s_lshl_b32 s37, s33, 5')
    A('s_add_u32 s37, s37, s32')
    A('s_mul_i32 s37, s37, 2560')
    A('s_add_u32 s37, s37, s36')
    A('s_mul_i32 s38, s3, 2560')
    A('s_waitcnt lgkmcnt(0)')
    srd(A, SW, 16, WS_SIZE)
    stamp(A, 2, 0, SW, T)
    def dma():
        A('s_mov_b32 m0, s38')
        A('s_xor_b32 s38, s38, %d' % SLOT)
        A(f'buffer_load_dwordx4 v{vL16}, s[{SW}:{SW+3}], s37 offen lds')
        A(f'buffer_load_dwordx4 v{vL16}, s[{SW}:{SW+3}], s37 offen offset:1024 lds')
        A('s_mov_b64 exec, s[40:41]')
        A(f'buffer_load_dwordx4 v{vL16}, s[{SW}:{SW+3}], s37 offen offset:2048 lds')
        A('s_mov_b64 exec, -1')
        A('s_add_u32 s37, s37, 10240')
    dma()
    A('s_mul_i32 s39, s30, 64')
    A('s_add_u32 s39, s39, s34')
    A('s_mul_i32 s39, s39, 1280')
    A(f's_add_u32 s39, s39, {WS_Q}')
    A('v_lshlrev_b32 v5, 3, v2')
    for x in range(2):
        A(f'v_mov_b32 v{Q8[x]}, 0'); A(f'v_mov_b32 v{Q8[x]+1}, 0')
    for x in range(2):
        A(f'buffer_load_dwordx2 {v(Q16[x],2)}, v5, s[{SW}:{SW+3}], s39 offen offset:{1280*x}')
        A(f'buffer_load_dwordx2 {v(Q16[x]+2,2)}, v5, s[{SW}:{SW+3}], s39 offen offset:{1280*x+512}')
    A('s_mov_b64 exec, s[40:41]')
    for x in range(2):
        A(f'buffer_load_dwordx2 {v(Q8[x],2)}, v5, s[{SW}:{SW+3}], s39 offen offset:{1280*x+1024}')
    A('s_mov_b64 exec, -1')
    dma()
    A('s_mul_i32 s44, s33, 10240')
    A('v_lshlrev_b32 v6, 3, v3')
    A(f'v_add_u32 v{aK}, s44, v5')
    A(f'v_add_u32 v{aK8}, s44, v6')
    A('v_mul_u32_u24 v7, 320, v4')
    A('v_lshl_add_u32 v7, v3, 4, v7')
    A(f'v_add_u32 v{aV}, s44, v7')
    for b in range(2):
        for i in range(8): A(f'v_mov_b32 v{V[b]+i}, {ONES:#x}')
    for x in range(2):
        for i in range(16): A(f'v_mov_b32 v{O[x]+i}, 0')
    for i in range(4): A(f'v_mov_b32 v{P[1]+4+i}, 0')
    A('s_waitcnt vmcnt(3)')
    A('s_barrier')
    stamp(A, 2, 1, SW, T)
    A(f'ds_read2st64_b64 {v(K16[1],4)}, v5 offset0:0 offset1:1')
    A(f'ds_read_b64 {v(K8[1],2)}, v6 offset:1024')
    A(f'ds_read2st64_b64 {v(K16[0],4)}, v{aK} offset0:0 offset1:1')
    A(f'ds_read_b64 {v(K8[0],2)}, v{aK8} offset:1024')
    A('s_mov_b64 exec, s[42:43]')
    A(f'ds_read_b128 {v(V[0],4)}, v{aV} offset:1280')
    A(f'ds_read_b128 {v(V[0]+4,4)}, v{aV} offset:1920')
    A('s_mov_b64 exec, -1')
    A('s_waitcnt lgkmcnt(4)')
    for x in range(2):
        A(f'v_mfma_f32_32x32x16_bf16 {v(S[x],16)}, {v(K16[1],4)}, {v(Q16[x],4)}, 0')
    for x in range(2):
        A(f'v_mfma_f32_32x32x8bf16_1k {v(S[x],16)}, {v(K8[1],2)}, {v(Q8[x],2)}, {v(S[x],16)}')
    A('s_nop 15')
    def rowmax(dst, src, t):
        A(f'v_max3_f32 v{dst}, v{src}, v{src+1}, v{src+2}')
        for i in range(3, 15, 2):
            A(f'v_max3_f32 v{dst}, v{src+i}, v{src+i+1}, v{dst}')
        A(f'v_max_f32 v{dst}, v{src+15}, v{dst}')
        A(f'v_mov_b32 v{t}, v{dst}')
        A('s_nop 1')
        A(f'v_permlane32_swap_b32 v{dst}, v{t}')
        A(f'v_max_f32 v{dst}, v{dst}, v{t}')
    for x in range(2):
        rowmax(T, S[x], T+1)
        for i in range(16): A(f'v_sub_f32 v{C[x]+i}, 0, v{T}')
    A('s_waitcnt lgkmcnt(0)')
    A(f'v_mfma_f32_32x32x16_bf16 {v(S[0],16)}, {v(K16[0],4)}, {v(Q16[0],4)}, {v(C[0],16)}')
    A(f'v_mfma_f32_32x32x8bf16_1k {v(S[0],16)}, {v(K8[0],2)}, {v(Q8[0],2)}, {v(S[0],16)}')
    A('s_mov_b32 s45, 0')
    A('s_nop 15')
    A('s_branch att_loop')
    A('.p2align 6')
    A('att_loop:')
    for tl in range(4):
        for x in range(2):
            cur, nxt = S[x], S[x ^ 1]
            kb = (tl + x) & 1
            e = lambda i: f'v_exp_f32 v{cur+i}, v{cur+i}'
            c = lambda j: f'v_cvt_pk_bf16_f32 v{P[x]+j}, v{cur+2*j}, v{cur+2*j+1}'
            if tl == 3 and x == 0:
                A('s_waitcnt vmcnt(0) lgkmcnt(0)')
                A('s_barrier')
                A('s_cmp_ge_u32 s45, 6')
                A('s_cbranch_scc1 att_nodma')
                dma()
                A('att_nodma:')
                A(f'v_xor_b32 v{aK}, {SLOT}, v{aK}')
                A(f'v_xor_b32 v{aK8}, {SLOT}, v{aK8}')
            else:
                A('s_waitcnt lgkmcnt(0)')
            if tl == 3 and x == 1:
                A(f'v_xor_b32 v{aV}, {SLOT}, v{aV}')
            A(f'v_mfma_f32_32x32x16_bf16 {v(nxt,16)}, {v(K16[kb],4)}, {v(Q16[x^1],4)}, {v(C[x^1],16)}')
            tn = (tl + 1) & 3
            if x == 0:
                A(f'ds_read2st64_b64 {v(K16[(tl+1)&1],4)}, v{aK} offset0:{tn*5} offset1:{tn*5+1}')
            else:
                A('s_mov_b64 exec, s[42:43]')
                A(f'ds_read_b128 {v(V[(tl+1)&1],4)}, v{aV} offset:{tn*2560+1280}')
                A(f'ds_read_b128 {v(V[(tl+1)&1]+4,4)}, v{aV} offset:{tn*2560+1920}')
                A('s_mov_b64 exec, -1')
            for y in (e(0), e(1), e(2), c(0), e(3)): A(y)
            A(f'v_mfma_f32_32x32x8bf16_1k {v(nxt,16)}, {v(K8[kb],2)}, {v(Q8[x^1],2)}, {v(nxt,16)}')
            for y in (e(4), c(1), e(5), e(6), c(2), e(7)): A(y)
            vprev = V[tl & 1] if x == 1 else V[(tl - 1) & 1]
            A(f'v_mfma_f32_32x32x16_bf16 {v(O[x^1],16)}, {v(vprev+4,4)}, {v(P[x^1]+4,4)}, {v(O[x^1],16)}')
            if x == 0:
                A(f'ds_read_b64 {v(K8[(tl+1)&1],2)}, v{aK8} offset:{tn*2560+1024}')
            for y in (e(8), c(3), e(9), e(10), c(4), e(11)): A(y)
            A(f'v_mfma_f32_32x32x16_bf16 {v(O[x],16)}, {v(V[tl&1],4)}, {v(P[x],4)}, {v(O[x],16)}')
            if tl == 3 and x == 1:
                A('s_add_u32 s45, s45, 1')
            for y in (e(12), c(5), e(13), e(14), e(15), c(6), c(7)): A(y)
    A('s_cmp_lt_u32 s45, 8')
    A('s_cbranch_scc1 att_loop')
    A('s_nop 0')
    A(f'v_mfma_f32_32x32x16_bf16 {v(O[1],16)}, {v(V[1]+4,4)}, {v(P[1]+4,4)}, {v(O[1],16)}')
    stamp(A, 2, 2, SW, T)
    A('s_lshl_b32 s46, s3, 12')
    A(f's_add_u32 s46, s46, {XCH}')
    A(f'v_add_u32 v5, s46, v{vL16}')
    A('v_xor_b32 v6, 0x4000, v5')
    A('s_nop 15')
    A('s_cmp_eq_u32 s33, 0')
    A('s_cbranch_scc1 att_x0')
    for q in range(4): A(f'ds_write_b128 v5, {v(O[0]+4*q,4)} offset:{1024*q}')
    A('s_waitcnt lgkmcnt(0)')
    for i in range(13): A(f'v_mov_b32 v{O[0]+i}, v{O[1]+i}')
    for i in range(4): A(f'v_mov_b32 v{Q16[0]+i}, v{Q16[1]+i}')
    for i in range(2): A(f'v_mov_b32 v{Q8[0]+i}, v{Q8[1]+i}')
    A('s_branch att_x1')
    A('att_x0:')
    for q in range(4): A(f'ds_write_b128 v5, {v(O[1]+4*q,4)} offset:{1024*q}')
    A('s_waitcnt lgkmcnt(0)')
    A('att_x1:')
    A('s_barrier')
    for q in range(4): A(f'ds_read_b128 {v(S[0]+4*q,4)}, v6 offset:{1024*q}')
    A('s_add_u32 s34, s34, s33')
    A('s_mul_i32 s47, s34, 40960')
    A(f's_add_u32 s47, s47, {WS_O}')
    A('s_lshl_b32 s48, s30, 10')
    A('s_add_u32 s48, s48, s47')
    A('s_lshr_b32 s49, s30, 1')
    A('s_lshl_b32 s49, s49, 9')
    A('s_and_b32 s50, s30, 1')
    A('s_lshl_b32 s50, s50, 3')
    A('s_add_u32 s49, s49, s50')
    A('s_add_u32 s49, s49, s47')
    A('s_add_u32 s49, s49, 32768')
    A(f's_mov_b32 s51, {f2u(2.0**40):#x}')
    A('s_waitcnt lgkmcnt(0)')
    for i in range(13): A(f'v_add_f32 v{O[0]+i}, v{O[0]+i}, v{S[0]+i}')
    A(f'v_cmp_nle_f32 vcc, v{O[0]+12}, s51')
    A('s_nop 4')
    A('s_cbranch_vccnz att_slow')
    A('att_fin:')
    A(f'v_rcp_f32 v{T}, v{O[0]+12}')
    A('s_nop 0')
    for i in range(12): A(f'v_mul_f32 v{O[0]+i}, v{T}, v{O[0]+i}')
    for j in range(6): A(f'v_cvt_pk_bf16_f32 v{P[0]+j}, v{O[0]+2*j}, v{O[0]+2*j+1}')
    A(f'buffer_store_dwordx4 {v(P[0],4)}, v{vL16}, s[{SW}:{SW+3}], s48 offen')
    A('s_mov_b64 exec, s[40:41]')
    A(f'buffer_store_dwordx2 {v(P[0]+4,2)}, v{vL16}, s[{SW}:{SW+3}], s49 offen')
    A('s_mov_b64 exec, -1')
    stamp(A, 2, 3, SW, T)
    A('att_done:')
    A('s_endpgm')
    A('att_slow:')
    m_, al = T+2, T+3
    A('v_lshlrev_b32 v5, 3, v2')
    A('v_lshlrev_b32 v6, 3, v3')
    A('v_mul_u32_u24 v7, 320, v4')
    A('v_lshl_add_u32 v7, v3, 4, v7')
    A(f'v_mov_b32 v{m_}, 0xff800000')
    for i in range(16): A(f'v_mov_b32 v{O[0]+i}, 0')
    A('s_mov_b32 s45, 0')
    A('att_slow_loop:')
    A(f'buffer_load_dwordx2 {v(K16[0],2)}, v5, s[{SW}:{SW+3}], s36 offen')
    A(f'buffer_load_dwordx2 {v(K16[0]+2,2)}, v5, s[{SW}:{SW+3}], s36 offen offset:512')
    A(f'buffer_load_dwordx2 {v(K8[0],2)}, v6, s[{SW}:{SW+3}], s36 offen offset:1024')
    A('s_mov_b64 exec, s[42:43]')
    A(f'buffer_load_dwordx4 {v(V[0],4)}, v7, s[{SW}:{SW+3}], s36 offen offset:1280')
    A(f'buffer_load_dwordx4 {v(V[0]+4,4)}, v7, s[{SW}:{SW+3}], s36 offen offset:1920')
    A('s_mov_b64 exec, -1')
    A('s_add_u32 s36, s36, 2560')
    A('s_waitcnt vmcnt(0)')
    A(f'v_mfma_f32_32x32x16_bf16 {v(S[0],16)}, {v(K16[0],4)}, {v(Q16[0],4)}, 0')
    A(f'v_mfma_f32_32x32x8bf16_1k {v(S[0],16)}, {v(K8[0],2)}, {v(Q8[0],2)}, {v(S[0],16)}')
    A('s_nop 15')
    rowmax(T, S[0], T+1)
    A(f'v_max_f32 v{T}, v{T}, v{m_}')
    A(f'v_sub_f32 v{al}, v{m_}, v{T}')
    A(f'v_exp_f32 v{al}, v{al}')
    A(f'v_mov_b32 v{m_}, v{T}')
    for i in range(16): A(f'v_sub_f32 v{S[0]+i}, v{S[0]+i}, v{m_}')
    for i in range(16): A(f'v_exp_f32 v{S[0]+i}, v{S[0]+i}')
    for i in range(16): A(f'v_mul_f32 v{O[0]+i}, v{al}, v{O[0]+i}')
    for j in range(8): A(f'v_cvt_pk_bf16_f32 v{P[0]+j}, v{S[0]+2*j}, v{S[0]+2*j+1}')
    A('s_nop 1')
    A(f'v_mfma_f32_32x32x16_bf16 {v(O[0],16)}, {v(V[0],4)}, {v(P[0],4)}, {v(O[0],16)}')
    A(f'v_mfma_f32_32x32x16_bf16 {v(O[0],16)}, {v(V[0]+4,4)}, {v(P[0]+4,4)}, {v(O[0],16)}')
    A('s_add_u32 s45, s45, 1')
    A('s_nop 15')
    A('s_cmp_lt_u32 s45, 64')
    A('s_cbranch_scc1 att_slow_loop')
    A('s_branch att_fin')
    return name, A.text(), kernel_desc(name, R.hi), (256, 512, XCH + 32768)

def gen_sk(kind):
    A = Asm()
    wo = kind == 'wo'
    name = kind + '_kernel'
    kid = 3 if wo else 5
    A(kernel_header(name))
    SW, SX = 16, 20
    NSW = 5 if wo else 12
    NTOT = 4 * NSW
    TS = 40960 if wo else 98304
    WBASE = WS_WO if wo else WS_WD
    ABASE = WS_O if wo else WS_ACT
    D = 5 if wo else 6
    XL = 61440
    R = Alloc(8, 256)
    vW, vW2 = R(), R()
    vA = [R(), R()]
    vR = R()
    RES = R(12, 4)
    buf = [R(36, 4) for _ in range(D)]
    A('s_cmp_ge_u32 s2, 256')
    A(f's_cbranch_scc1 {kind}_done')
    A('s_load_dwordx2 s[16:17], s[0:1], 72')
    A(f's_load_dwordx2 s[20:21], s[0:1], {0 if wo else 56}')
    A('v_lshrrev_b32 v1, 6, v0')
    A('v_and_b32 v2, 63, v0')
    A('v_readfirstlane_b32 s3, v1')
    A('s_and_b32 s8, s2, 7')
    A('s_lshr_b32 s9, s2, 3')
    A('s_lshr_b32 s10, s8, 1')
    A('s_lshl_b32 s30, s10, 3')
    A('s_lshr_b32 s10, s9, 2')
    A('s_add_u32 s30, s30, s10')
    A('s_and_b32 s10, s8, 1')
    A('s_lshl_b32 s31, s10, 2')
    A('s_and_b32 s10, s9, 3')
    A('s_add_u32 s31, s31, s10')
    A('v_and_b32 v3, 15, v2')
    A('v_lshrrev_b32 v4, 4, v2')
    A(f'v_lshlrev_b32 v{vW}, 4, v2')
    A(f'v_add_u32 v{vW2}, 4096, v{vW}')
    A('v_lshlrev_b32 v5, 9, v4')
    A(f'v_lshl_add_u32 v{vA[0]}, v3, 4, v5')
    A(f'v_add_u32 v{vA[1]}, {TS}, v{vA[0]}')
    A(f's_mul_i32 s32, s31, {NTOT}')
    A(f's_mul_i32 s34, s3, {NSW}')
    A('s_add_u32 s32, s32, s34')
    A('s_mul_i32 s32, s32, 5120')
    A(f's_add_u32 s32, s32, {WBASE}')
    A(f's_mul_i32 s33, s30, {2*TS}')
    A('s_lshl_b32 s34, s34, 11')
    A('s_add_u32 s33, s33, s34')
    A(f's_add_u32 s33, s33, {ABASE}')
    A('s_waitcnt lgkmcnt(0)')
    srd(A, SW, 16, WS_SIZE)
    srd(A, SX, 20, 2048*640*2)
    stamp(A, kid, 0, SW, RES)
    def loads(b):
        r = []
        for tk in range(4):
            r.append(f'buffer_load_dwordx4 {v(buf[b]+20+4*tk,4)}, v{vA[tk>>1]}, s[{SW}:{SW+3}], s33 offen offset:{256*(tk&1)}')
        for F in range(5):
            r.append(f'buffer_load_dwordx4 {v(buf[b]+4*F,4)}, v{vW if F<4 else vW2}, s[{SW}:{SW+3}], s32 offen offset:{1024*(F&3)}')
        r.append('s_add_u32 s33, s33, 2048')
        r.append('s_add_u32 s32, s32, 5120')
        return r
    for b in range(D):
        for x in loads(b): A(x)
    A('s_lshl_b32 s34, s30, 1')
    A('s_lshr_b32 s35, s3, 1')
    A('s_add_u32 s34, s34, s35')
    A('s_mul_i32 s36, s34, 40960')
    A('s_mul_i32 s37, s31, 5120')
    A('s_add_u32 s36, s36, s37')
    A('s_and_b32 s35, s3, 1')
    A('s_lshl_b32 s37, s35, 8')
    A('s_add_u32 s36, s36, s37')
    A(f's_add_u32 s36, s36, {WS_H}')
    A('v_lshrrev_b32 v5, 1, v4')
    A('v_lshlrev_b32 v5, 9, v5')
    A('v_lshl_add_u32 v5, v3, 4, v5')
    A('v_and_b32 v6, 1, v4')
    A('v_lshl_add_u32 v5, v6, 3, v5')
    A(f'v_add_u32 v{vR}, 4096, v5')
    A('s_lshl_b32 s38, s30, 6')
    A('s_lshl_b32 s39, s3, 4')
    A('s_add_u32 s38, s38, s39')
    A('s_mul_i32 s38, s38, 1280')
    A('s_mul_i32 s39, s31, 160')
    A('s_add_u32 s38, s38, s39')
    A('v_mul_u32_u24 v5, 1280, v3')
    A('v_lshl_add_u32 v6, v4, 4, v5')
    A('v_lshl_add_u32 v7, v4, 3, v5')
    nres = 3
    if wo:
        A(f'buffer_load_dwordx4 {v(RES,4)}, v6, s[{SX}:{SX+3}], s38 offen')
        A(f'buffer_load_dwordx4 {v(RES+4,4)}, v6, s[{SX}:{SX+3}], s38 offen offset:64')
        A(f'buffer_load_dwordx2 {v(RES+8,2)}, v7, s[{SX}:{SX+3}], s38 offen offset:128')
    else:
        A(f'buffer_load_dwordx4 {v(RES,4)}, v{vA[0]}, s[{SW}:{SW+3}], s36 offen')
        A(f'buffer_load_dwordx4 {v(RES+4,4)}, v{vA[0]}, s[{SW}:{SW+3}], s36 offen offset:2048')
        A(f'buffer_load_dwordx2 {v(RES+8,2)}, v{vR}, s[{SW}:{SW+3}], s36 offen')
    acc = lambda F, tk: (F*4 + tk) * 4
    for S_ in range(NSW):
        b = S_ % D
        issued = min(NSW, D + max(0, S_ - 1))
        out = 9 * (issued - S_ - 1) + (nres if S_ < D else 0)
        if PROF and S_ < D: out += 0
        A(f's_waitcnt vmcnt({out})')
        if S_ == 0: stamp(A, kid, 1, SW, 5+0) if False else None
        ms = []
        for F in range(5):
            for tk in range(4):
                c = '0' if S_ == 0 else a(acc(F,tk),4)
                ms.append(f'v_mfma_f32_16x16x32_bf16 {a(acc(F,tk),4)}, {v(buf[b]+4*F,4)}, {v(buf[b]+20+4*tk,4)}, {c}')
        fill = loads((S_ - 1) % D) if (S_ >= 1 and S_ + D - 1 < NSW) else []
        for x in interleave(ms, fill): A(x)
    A('s_nop 7')
    for k in range(1, 4):
        A(f's_add_u32 s34, s3, {k}')
        A('s_and_b32 s34, s34, 3')
        A('s_mul_i32 s34, s34, 15360')
        A(f's_add_u32 s34, s34, {(k-1)*5120}')
        A(f'v_add_u32 v{8+0}, s34, v{vW}') if False else None
        A(f's_mov_b32 s{40+k}, s34')
    for w in range(4):
        if w < 3:
            A(f's_cmp_lg_u32 s3, {w}')
            A(f's_cbranch_scc1 {kind}_w{w+1}')
        for k in range(1, 4):
            tk = (w + k) & 3
            A(f'v_add_u32 v5, s{40+k}, v{vW}')
            for F in range(5):
                A(f'ds_write_b128 v5, {a(acc(F,tk),4)} offset:{1024*F}')
        for F in range(5):
            for i in range(4):
                A(f'v_accvgpr_read_b32 v{buf[0]+4*F+i}, a{acc(F,w)+i}')
        if w < 3:
            A(f's_branch {kind}_wj')
            A(f'{kind}_w{w+1}:')
    A(f'{kind}_wj:')
    A('s_mul_i32 s34, s3, 15360')
    A(f'v_add_u32 v5, s34, v{vW}')
    A('s_waitcnt lgkmcnt(0)')
    A('s_barrier')
    Y = buf[0]
    for k in range(3):
        for F in range(5):
            A(f'ds_read_b128 {v(buf[1+k]+4*F,4)}, v5 offset:{5120*k+1024*F}')
    A('s_waitcnt vmcnt(0)')
    for j in range(10):
        t0 = buf[4]
        A(f'v_lshlrev_b32 v{t0}, 16, v{RES+j}')
        A(f'v_and_b32 v{t0+1}, 0xffff0000, v{RES+j}')
        A(f'v_add_f32 v{Y+2*j}, v{Y+2*j}, v{t0}')
        A(f'v_add_f32 v{Y+2*j+1}, v{Y+2*j+1}, v{t0+1}')
    for k in range(3):
        A(f's_waitcnt lgkmcnt({10-5*k})')
        for i in range(20):
            A(f'v_add_f32 v{Y+i}, v{Y+i}, v{buf[1+k]+i}')
    for j in range(10):
        A(f'v_cvt_pk_bf16_f32 v{RES+j}, v{Y+2*j}, v{Y+2*j+1}')
    if wo:
        A(f'buffer_store_dwordx4 {v(RES,4)}, v{vA[0]}, s[{SW}:{SW+3}], s36 offen')
        A(f'buffer_store_dwordx4 {v(RES+4,4)}, v{vA[0]}, s[{SW}:{SW+3}], s36 offen offset:2048')
        A(f'buffer_store_dwordx2 {v(RES+8,2)}, v{vR}, s[{SW}:{SW+3}], s36 offen')
        s1, s2, on = buf[1], buf[1]+1, buf[1]+2
        A(f'v_mov_b32 v{on}, {ONES:#x}')
        A(f'v_dot2_f32_bf16 v{s2}, v{RES}, v{RES}, 0')
        A(f'v_dot2_f32_bf16 v{s1}, v{RES}, v{on}, 0')
        for j in range(1, 10):
            A(f'v_dot2_f32_bf16 v{s2}, v{RES+j}, v{RES+j}, v{s2}')
            A(f'v_dot2_f32_bf16 v{s1}, v{RES+j}, v{on}, v{s1}')
        A('s_nop 2')
        A(f'v_permlane32_swap_b32 v{s1}, v{s2}')
        A(f'v_add_f32 v{s1}, v{s1}, v{s2}')
        A(f'v_mov_b32 v{s2}, v{s1}')
        A('s_nop 1')
        A(f'v_permlane16_swap_b32 v{s1}, v{s2}')
        A(f'v_add_f32 v{s1}, v{s1}, v{s2}')
        A('s_lshl_b32 s34, s30, 1')
        A('s_lshr_b32 s37, s3, 1')
        A('s_add_u32 s34, s34, s37')
        A('s_lshl_b32 s34, s34, 3')
        A('s_add_u32 s34, s34, s31')
        A('s_lshl_b32 s34, s34, 8')
        A('s_lshl_b32 s37, s35, 6')
        A('s_add_u32 s34, s34, s37')
        A(f's_add_u32 s34, s34, {WS_ST}')
        A('v_lshrrev_b32 v5, 5, v2')
        A('v_lshlrev_b32 v5, 7, v5')
        A('v_lshl_add_u32 v5, v3, 2, v5')
        A(f'buffer_store_dword v{s1}, v5, s[{SW}:{SW+3}], s34 offen')
    else:
        A(f'buffer_store_dwordx4 {v(RES,4)}, v6, s[{SX}:{SX+3}], s38 offen')
        A(f'buffer_store_dwordx4 {v(RES+4,4)}, v6, s[{SX}:{SX+3}], s38 offen offset:64')
        A(f'buffer_store_dwordx2 {v(RES+8,2)}, v7, s[{SX}:{SX+3}], s38 offen offset:128')
    stamp(A, kid, 3, SW, buf[2])
    A(f'{kind}_done:')
    A('s_endpgm')
    acc_off = (R.hi + 3) // 4 * 4
    return name, A.text(), kernel_desc(name, acc_off + 80, accum=acc_off), (256, 256, 61440)

def gen_gu():
    A = Asm()
    name = 'gu_kernel'
    A(kernel_header(name))
    SW = 16
    NS = 7; STG = 20480; NST = 20
    A('s_cmp_ge_u32 s2, 256')
    A('s_cbranch_scc1 gu_done')
    A('s_load_dwordx2 s[16:17], s[0:1], 72')
    A('v_lshrrev_b32 v1, 6, v0')
    A('v_and_b32 v2, 63, v0')
    A('v_readfirstlane_b32 s3, v1')
    A('s_and_b32 s8, s2, 7')
    A('s_lshr_b32 s9, s2, 3')
    A('s_lshr_b32 s10, s8, 1')
    A('s_lshl_b32 s30, s10, 2')
    A('s_lshr_b32 s10, s9, 3')
    A('s_add_u32 s30, s30, s10')
    A('s_and_b32 s10, s8, 1')
    A('s_lshl_b32 s31, s10, 3')
    A('s_and_b32 s10, s9, 7')
    A('s_add_u32 s31, s31, s10')
    A('v_lshlrev_b32 v8, 4, v2')
    A('s_waitcnt lgkmcnt(0)')
    srd(A, SW, 16, WS_SIZE)
    A('s_cmp_lt_u32 s3, 4')
    A('s_cbranch_scc1 gu_compute')
    A('s_sub_u32 s32, s3, 4')
    A('s_lshl_b32 s33, s30, 2')
    A('s_add_u32 s33, s33, s32')
    A('s_mul_i32 s33, s33, 40960')
    A(f's_add_u32 s33, s33, {WS_H}')
    A('s_mul_i32 s34, s31, 245760')
    A('s_mul_i32 s35, s32, 3072')
    A('s_add_u32 s34, s34, s35')
    A(f's_add_u32 s34, s34, {WS_WGU}')
    A('s_lshl_b32 s36, s32, 11')
    A('s_add_u32 s36, s36, 12288')
    A('s_mov_b32 s37, 0')
    def issue():
        A('s_add_u32 s38, s37, s36')
        A('s_mov_b32 m0, s38')
        A('s_add_u32 s38, s37, s35')
        for j in range(2):
            A(f'buffer_load_dwordx4 v8, s[{SW}:{SW+3}], s33 offen offset:{1024*j} lds')
        A('s_mov_b32 m0, s38')
        A('s_add_u32 s33, s33, 2048')
        for j in range(3):
            A(f'buffer_load_dwordx4 v8, s[{SW}:{SW+3}], s34 offen offset:{1024*j} lds')
        A('s_add_u32 s34, s34, 12288')
        A(f's_add_u32 s37, s37, {STG}')
        A(f's_cmp_eq_u32 s37, {NS*STG}')
        A('s_cselect_b32 s37, 0, s37')
    A(f's_mov_b32 s39, {NS}')
    A('gu_lpro:')
    issue()
    A('s_sub_u32 s39, s39, 1')
    A('s_cmp_lg_u32 s39, 0')
    A('s_cbranch_scc1 gu_lpro')
    A(f's_waitcnt vmcnt({5*(NS-1)})')
    A('s_barrier')
    A(f's_mov_b32 s39, {NST-NS}')
    A('gu_lmain:')
    A(f's_waitcnt vmcnt({5*(NS-2)})')
    A('s_barrier')
    issue()
    A('s_sub_u32 s39, s39, 1')
    A('s_cmp_lg_u32 s39, 0')
    A('s_cbranch_scc1 gu_lmain')
    for st in range(NST-NS+1, NST):
        A(f's_waitcnt vmcnt({5*(NST-st-1)})')
        A('s_barrier')
    A('s_endpgm')
    A('gu_compute:')
    R = Alloc(9, 256)
    aA, aB, bA, bB = R(), R(), R(), R()
    X = [[R(4, 4) for _ in range(2)] for _ in range(2)]
    W = [[R(4, 4) for _ in range(3)] for _ in range(2)]
    acc = [[R(16, 4) for _ in range(3)] for _ in range(2)]
    EX = [R(2) for _ in range(2)]; EW = [R(2) for _ in range(3)]
    mean = [R(), R()]; rstd = [R(2), R(2)]; nr = [R(2), R(2)]
    T = R(32, 4)
    stamp(A, 4, 0, SW, T)
    A('s_and_b32 s32, s3, 1')
    A('s_lshr_b32 s33, s3, 1')
    A('s_lshl_b32 s34, s32, 12')
    A('s_add_u32 s34, s34, 12288')
    A(f'v_add_u32 v{bA}, s34, v8')
    A('s_mul_i32 s34, s33, 3072')
    A(f'v_add_u32 v{bB}, s34, v8')
    A(f'v_mov_b32 v{aA}, v{bA}'); A(f'v_mov_b32 v{aB}, v{bB}')
    A('s_lshl_b32 s35, s30, 2')
    A('s_lshl_b32 s36, s32, 1')
    A('s_add_u32 s35, s35, s36')
    A('s_lshl_b32 s36, s35, 11')
    A(f's_add_u32 s36, s36, {WS_ST}')
    A('v_lshlrev_b32 v5, 2, v2')
    for tt in range(2):
        for f in range(8):
            A(f'buffer_load_dword v{T+8*tt+f}, v5, s[{SW}:{SW+3}], s36 offen offset:{2048*tt+256*f}')
    A('s_mul_i32 s36, s31, 6')
    A('s_mul_i32 s37, s33, 3')
    A('s_add_u32 s36, s36, s37')
    A('s_lshl_b32 s37, s36, 7')
    A(f's_add_u32 s37, s37, {WS_CS}')
    A('v_and_b32 v3, 31, v2')
    A('v_lshlrev_b32 v6, 2, v3')
    for kq in range(5):
        for m in range(3):
            A(f'buffer_load_dword v{T+16+5*m+kq}, v6, s[{SW}:{SW+3}], s37 offen offset:{128*m}')
        A('s_add_u32 s37, s37, 12288')
    for i in range(96): A(f'v_mov_b32 v{acc[0][0]+i}, 0')
    A('s_mul_i32 s38, s35, 98304')
    A('s_lshl_b32 s39, s36, 10')
    A('s_add_u32 s38, s38, s39')
    A(f's_add_u32 s50, s38, {WS_ACT}')
    A('s_add_u32 s51, s50, 98304')
    A('s_mov_b32 s40, -1'); A('s_mov_b32 s41, 0')
    A('s_waitcnt vmcnt(15)')
    for tt in range(2):
        b = T + 8*tt
        for f in range(1, 8): A(f'v_add_f32 v{b}, v{b}, v{b+f}')
        A(f'v_mov_b32 v{b+1}, v{b}')
        A('s_nop 1')
        A(f'v_permlane32_swap_b32 v{b}, v{b+1}')
        ln_stats(A, b, b+1, mean[tt], rstd[tt], b+2)
        ext_tok(A, mean[tt], EX[tt], b+2, b+3, 40)
        A(f'v_mul_f32 v{nr[tt]}, {f2u(-math.log2(math.e)):#x}, v{rstd[tt]}')
        A(f'v_mul_f32 v{rstd[tt]}, v{rstd[tt]}, v{rstd[tt]}')
        A(f'v_mov_b32 v{nr[tt]+1}, v{nr[tt]}')
        A(f'v_mov_b32 v{rstd[tt]+1}, v{rstd[tt]}')
    A('s_waitcnt vmcnt(0)')
    for m in range(3):
        b = T + 16 + 5*m
        for kq in range(1, 5): A(f'v_add_f32 v{b}, v{b}, v{b+kq}')
        ext_feat(A, b, EW[m], b+1, b+2)
    def reads(buf, s_):
        r = []
        for tt in range(2): r.append(f'ds_read_b128 {v(X[buf][tt],4)}, v{aA} offset:{2048*tt + 1024*s_}')
        for m in range(3): r.append(f'ds_read_b128 {v(W[buf][m],4)}, v{aB} offset:{6144*s_ + 1024*m}')
        return r
    def mfmas(buf):
        return [f'v_mfma_f32_32x32x16_bf16 {v(acc[tt][m],16)}, {v(W[buf][m],4)}, {v(X[buf][tt],4)}, {v(acc[tt][m],16)}' for m in range(3) for tt in range(2)]
    A('s_mov_b32 s37, 0')
    A(f's_mov_b32 s48, {NST}')
    A('s_barrier')
    stamp(A, 4, 1, SW, T)
    for x in reads(0, 0): A(x)
    A('gu_loop:')
    A('s_waitcnt lgkmcnt(0)')
    for x in interleave(mfmas(0), reads(1, 1) + [f's_add_u32 s37, s37, {STG}', f's_cmp_eq_u32 s37, {NS*STG}', 's_cselect_b32 s37, 0, s37']): A(x)
    A('s_waitcnt lgkmcnt(0)')
    A('s_barrier')
    for x in interleave(mfmas(1), [f'v_add_u32 v{aA}, s37, v{bA}', f'v_add_u32 v{aB}, s37, v{bB}'] + reads(0, 0) + ['s_sub_u32 s48, s48, 1', 's_cmp_lg_u32 s48, 0']): A(x)
    A('s_cbranch_scc1 gu_loop')
    stamp(A, 4, 2, SW, T)
    for m in range(3):
        for tt in range(2):
            A(f'v_mfma_f32_32x32x8bf16_1k {v(acc[tt][m],16)}, {v(EW[m],2)}, {v(EX[tt],2)}, {v(acc[tt][m],16)}')
    A('s_nop 7')
    k = 0
    for m in range(3):
        for tt in range(2):
            g = acc[tt][m]; u = g + 8
            z = T + 8*(k & 1); d = T + 16 + 4*(k & 3); k += 1
            for i in range(0, 8, 2): A(f'v_pk_mul_f32 {v(z+i,2)}, {v(g+i,2)}, {v(nr[tt],2)}')
            for i in range(0, 8, 2): A(f'v_pk_mul_f32 {v(g+i,2)}, {v(g+i,2)}, {v(u+i,2)}')
            for i in range(8): A(f'v_exp_f32 v{z+i}, v{z+i}')
            for i in range(0, 8, 2): A(f'v_pk_mul_f32 {v(g+i,2)}, {v(g+i,2)}, {v(rstd[tt],2)}')
            for i in range(0, 8, 2): A(f'v_pk_add_f32 {v(z+i,2)}, {v(z+i,2)}, 1.0 op_sel_hi:[1,0]')
            for i in range(8): A(f'v_rcp_f32 v{z+i}, v{z+i}')
            A('s_nop 0')
            for i in range(0, 8, 2): A(f'v_pk_mul_f32 {v(g+i,2)}, {v(g+i,2)}, {v(z+i,2)}')
            for j in range(4): A(f'v_cvt_pk_bf16_f32 v{d+j}, v{g+2*j}, v{g+2*j+1}')
            A(f'buffer_store_dwordx4 {v(d,4)}, v8, s[{SW}:{SW+3}], s{50+tt} offen offset:{1024*m}')
    stamp(A, 4, 3, SW, T)
    A('gu_done:')
    A('s_endpgm')
    return name, A.text(), kernel_desc(name, R.hi), (256, 512, NS*STG)

def main():
    ks = [gen_prep(), gen_qkv(), gen_att(), gen_sk('wo'), gen_gu(), gen_sk('down')]
    extra = 0
    for x in sys.argv:
        if x.startswith('--extra='): extra = int(x[8:])
    hdr = open('cdna_kernels/' + NAME + '.s.ref').read().split('; Override launch')[0]
    out = hdr
    for n, _, _, (g, b, l) in ks:
        out += f'; @launch kernel={n} grid=({g},1,1) block=({b},1,1) lds={l}\n'
    for i in range(extra):
        out += '; @launch kernel=nop_kernel grid=(256,1,1) block=(256,1,1) lds=0\n'
    out += '.amdgcn_target "amdgcn-amd-amdhsa--gfx950"\n'
    for n, t, d, _ in ks: out += t
    if extra: out += kernel_header('nop_kernel') + '    s_endpgm\n'
    for n, t, d, _ in ks: out += d
    if extra: out += kernel_desc('nop_kernel', 8)
    dst = [x for x in sys.argv[1:] if not x.startswith('--')]
    open(dst[0] if dst else 'out1.s', 'w').write(out)


def check(W, inp, o, exp):
    import numpy as np, torch
    def bf(off, n): return torch.from_numpy(W[off:off+2*n].view(np.int16).copy()).view(torch.bfloat16).float()
    def f32(off, n): return torch.from_numpy(W[off:off+4*n].view(np.float32).copy())
    def rel(a, b): return 'rel %.5f maxabs %.4g nan %d' % (((a-b).norm()/b.norm()).item(), (a-b).abs().max().item(), torch.isnan(a).sum().item())
    x = inp['A_x'][0].float(); wqkv = inp['A_wqkv'].float(); wo = inp['A_wo'].float()
    wg = inp['B_w_gate'].float(); wu = inp['B_w_up'].float(); wd = inp['B_w_down'].float()
    def ln(z): return (z - z.mean(-1, keepdim=True)) / torch.sqrt(z.var(-1, keepdim=True, unbiased=False) + 1e-5)
    perm16 = torch.tensor([[8*(j//4) + 4*h + j % 4 for j in range(8)] for h in range(2)])
    nat16 = torch.arange(16).reshape(2, 8)
    def img(off, steps, order):
        a = bf(off, 64*steps*512).reshape(64, steps, 2, 32, 8)
        r = torch.zeros(64, 32, steps, 16)
        for h in range(2):
            r[:, :, :, order[h]] = a[:, :, h].permute(0, 2, 1, 3)
        return r.reshape(2048, steps*16)
    g = bf(WS_WGU, 16*40*6*512).reshape(16, 40, 6, 2, 32, 8)
    g = g.permute(1, 3, 5, 0, 2, 4).reshape(640, 96, 32)
    print('  Wgu gate', rel(g[:, :, :16].reshape(640, 1536), wg), '| up', rel(g[:, :, 16:].reshape(640, 1536), wu))
    cs = f32(WS_CS, 5*3072).reshape(5, 96, 32).sum(0)
    print('  colsum', rel(cs[:, :16].reshape(-1), wg.sum(0)), rel(cs[:, 16:].reshape(-1), wu.sum(0)))
    feat = torch.zeros(5, 16, dtype=torch.long)
    for F in range(5):
        for n in range(16):
            gg, i = n // 4, n % 4
            feat[F, n] = 32*(F//2) + 8*gg + 4*(F % 2) + i if F < 4 else 64 + n
    def skw(off, NS, rowf, K):
        a = bf(off, 8*NS*5*512).reshape(8, NS, 5, 4, 16, 8)
        r = torch.zeros(K, 640)
        for S in range(NS):
            for gq in range(4):
                for j in range(8):
                    row = rowf(S, gq, j)
                    for F in range(5):
                        for ft in range(8):
                            r[row, ft*80 + feat[F]] = a[ft, S, F, gq, :, j]
        return r
    print('  Wd', rel(skw(WS_WD, 48, lambda S, g_, j: 32*S + 16*(g_//2) + 8*(j//4) + 4*(g_ % 2) + j % 4, 1536), wd))
    def worow(S, g_, j):
        if S < 16: return 20*(2*S + g_//2) + 8*(j//4) + 4*(g_ % 2) + j % 4
        return 20*(8*(S-16) + 4*(g_//2) + 2*(g_ % 2) + j//4) + 16 + j % 4
    print('  Wo', rel(skw(WS_WO, 20, worow, 640), wo))
    qkv = ln(x) @ wqkv
    q = bf(WS_Q, 32*64*640).reshape(32, 64, 5, 32, 4).permute(1, 3, 0, 2, 4).reshape(2048, 640)
    print('  Q', rel(q, qkv[:, :640]*QSCALE))
    kv = bf(WS_KV, 32*64*1280).reshape(32, 64, 2, 640)
    kk = kv[:, :, 0].reshape(32, 64, 5, 32, 4).permute(1, 3, 0, 2, 4).reshape(2048, 640)
    print('  K', rel(kk, qkv[:, 640:1280]))
    vv = kv[:, :, 1].reshape(32, 64, 2, 2, 20, 8)
    vr = torch.zeros(64, 2, 16, 32, 20)
    for h in range(2):
        vr[:, :, perm16[h]] = vv[:, :, :, h].permute(1, 2, 4, 0, 3)
    vr = vr.reshape(2048, 640)
    print('  V', rel(vr, qkv[:, 1280:]))
    qh = q.reshape(2048, 32, 20).permute(1, 0, 2); kh = kk.reshape(2048, 32, 20).permute(1, 0, 2); vh = vr.reshape(2048, 32, 20).permute(1, 0, 2)
    oref = (torch.softmax(qh @ kh.transpose(1, 2) * math.log(2), -1) @ vh).permute(1, 0, 2)
    om = img(WS_O, 40, perm16)
    oo = torch.zeros(2048, 32, 20)
    oo[:, :, :16] = om[:, :512].reshape(2048, 32, 16)
    a = bf(WS_O, 64*40*512).reshape(64, 40, 2, 32, 2, 4)[:, 32:]
    oo[:, :, 16:] = a.permute(0, 3, 1, 2, 4, 5).reshape(2048, 32, 4)
    print('  O', rel(oo, oref))
    href = x + oo.reshape(2048, 640) @ wo
    hh = img(WS_H, 40, nat16)
    print('  H', rel(hh, href))
    st = f32(WS_ST, 64*8*64).reshape(64, 8, 2, 32).sum(1)
    print('  ST', rel(st[:, 0].reshape(-1), hh.sum(-1)), rel(st[:, 1].reshape(-1), (hh*hh).sum(-1)))
    l2 = ln(hh)
    aref = torch.nn.functional.silu(l2 @ wg) * (l2 @ wu)
    act = img(WS_ACT, 96, perm16)
    print('  ACT', rel(act, aref))
    print('  OUT(self)', rel(o, hh + act @ wd))
    qh = (qkv[:, :640]*20**-0.5).reshape(2048, 32, 20).permute(1, 0, 2); kh = qkv[:, 640:1280].reshape(2048, 32, 20).permute(1, 0, 2); vh = qkv[:, 1280:].reshape(2048, 32, 20).permute(1, 0, 2)
    h32 = x + (torch.softmax(qh @ kh.transpose(1, 2), -1) @ vh).permute(1, 0, 2).reshape(2048, 640) @ wo
    l32 = ln(h32); o32 = h32 + (torch.nn.functional.silu(l32 @ wg) * (l32 @ wu)) @ wd
    print('  ours vs fp32', rel(o, o32), '| ref vs fp32', rel(exp, o32))

if __name__ == '__main__':
    main()
```

```python
import sys, math, struct
from dsl import *

NAME = 'sequential_preLN__softmax_full_mha__swiglu_ffn__prompt'
PROF = '--prof' in sys.argv
OPT = set(x[2:] for x in sys.argv if x.startswith('--'))

WS_Q   = 0x0000000
WS_KV  = 0x0280000
WS_O   = 0x0780000
WS_H   = 0x0A00000
WS_ACT = 0x0C80000
WS_WO  = 0x1280000
WS_WGU = 0x1350000
WS_WD  = 0x1710000
WS_CS  = 0x18F0000
WS_ST  = 0x1900000
WS_PROF= 0x1A00000
WS_SIZE= 0x2000000

def f2u(x): return struct.unpack('<I', struct.pack('<f', x))[0]
QSCALE = (20 ** -0.5) * math.log2(math.e)
ONES = 0x3f803f80

def div_magic(A, dst, src, d):
    m, sh = {5: (52429, 18), 10: (52429, 19), 6: (43691, 18), 48: (43691, 21), 20: (52429, 20)}[d]
    A(f's_mul_i32 s{dst}, s{src}, {m}')
    A(f's_lshr_b32 s{dst}, s{dst}, {sh}')

def stamp(A, kid, pt, sws, vt, cond_wave=None):
    if not PROF: return
    A(f's_memrealtime s[96:97]')
    A(f's_memtime s[94:95]')
    A(f's_lshl_b32 s98, s2, 2')
    A(f's_add_u32 s98, s98, {WS_PROF + (kid*8+pt)*1024}')
    A(f's_add_u32 s99, s98, 65536')
    A(f's_waitcnt lgkmcnt(0)')
    A(f'v_mov_b32 v{vt}, s96')
    A(f'v_mov_b32 v{vt+1}, 0')
    A(f'buffer_store_dword v{vt}, v{vt+1}, s[{sws}:{sws+3}], s98 offen')
    A(f'v_mov_b32 v{vt}, s94')
    A(f'buffer_store_dword v{vt}, v{vt+1}, s[{sws}:{sws+3}], s99 offen')

def gen_prep():
    A = Asm()
    name = 'prep_kernel'
    A(kernel_header(name))
    SW, SA, SB = 16, 20, 24
    A('s_cmp_ge_u32 s2, 188')
    A('s_cbranch_scc1 prep_done')
    A('s_load_dwordx2 s[4:5], s[0:1], 16')
    A('s_load_dwordx4 s[8:11], s[0:1], 32')
    A('s_load_dwordx2 s[12:13], s[0:1], 48')
    A('s_load_dwordx2 s[16:17], s[0:1], 72')
    A('v_lshrrev_b32 v1, 6, v0')
    A('v_and_b32 v2, 63, v0')
    A('v_readfirstlane_b32 s3, v1')
    A('s_waitcnt lgkmcnt(0)')
    srd(A, SW, 16, WS_SIZE)
    A('v_and_b32 v3, 3, v2')
    A('v_bfe_u32 v4, v2, 2, 2')
    A('v_lshrrev_b32 v5, 4, v2')
    A('s_mul_i32 s30, s3, 5120')
    A('s_cmp_ge_u32 s2, 120')
    A('s_cbranch_scc1 prep_sk')
    div_magic(A, 31, 2, 5)
    A('s_mul_i32 s32, s31, 5')
    A('s_sub_u32 s32, s2, s32')
    A('s_lshl_b32 s33, s32, 3')
    A('s_add_u32 s33, s33, s3')
    srd(A, SA, 8, 640*1536*2)
    srd(A, SB, 10, 640*1536*2)
    A('v_lshrrev_b32 v6, 3, v2')
    A('v_mul_u32_u24 v6, 3072, v6')
    A('v_and_b32 v7, 7, v2')
    A('v_lshl_add_u32 v6, v7, 4, v6')
    A('s_mul_i32 s34, s33, 49152')
    A('s_lshl_b32 s35, s31, 7')
    A('s_add_u32 s34, s34, s35')
    A(f's_add_u32 s35, s34, {8*3072 - 1024}')
    A('s_mov_b32 m0, s30')
    A('s_nop 0')
    A(f'buffer_load_dwordx4 v6, s[{SA}:{SA+3}], s34 offen lds')
    A(f'buffer_load_dwordx4 v6, s[{SA}:{SA+3}], s35 offen offset:1024 lds')
    A('s_add_u32 s36, s30, 2048')
    A('s_mov_b32 m0, s36')
    A('s_nop 0')
    A(f'buffer_load_dwordx4 v6, s[{SB}:{SB+3}], s34 offen lds')
    A(f'buffer_load_dwordx4 v6, s[{SB}:{SB+3}], s35 offen offset:1024 lds')
    A('v_and_b32 v7, 1, v5')
    A('v_lshrrev_b32 v8, 1, v5')
    A('v_lshl_add_u32 v8, v8, 3, v4')
    A('v_lshlrev_b32 v8, 7, v8')
    A('v_lshl_add_u32 v8, v7, 11, v8')
    A('v_lshl_add_u32 v8, v3, 3, v8')
    A('v_add_u32 v8, s30, v8')
    A('v_lshlrev_b32 v9, 4, v2')
    A('s_waitcnt vmcnt(0)')
    for m in range(4):
        A(f'ds_read_b64_tr_b16 v[{16+4*m}:{17+4*m}], v8 offset:{32*m}')
        A(f'ds_read_b64_tr_b16 v[{18+4*m}:{19+4*m}], v8 offset:{32*m+512}')
    A(f'v_mov_b32 v10, {ONES:#x}')
    A('s_waitcnt lgkmcnt(0)')
    for m in range(4):
        A('s_lshl_b32 s36, s31, 2')
        A(f's_add_u32 s36, s36, {m}')
        div_magic(A, 37, 36, 6)
        A('s_mul_i32 s38, s37, 6')
        A('s_sub_u32 s38, s36, s38')
        A('s_mul_i32 s37, s37, 40')
        A('s_add_u32 s37, s37, s33')
        A('s_mul_i32 s37, s37, 6')
        A('s_add_u32 s37, s37, s38')
        A('s_lshl_b32 s37, s37, 10')
        A(f's_add_u32 s37, s37, {WS_WGU}')
        A(f'buffer_store_dwordx4 v[{16+4*m}:{19+4*m}], v9, s[{SW}:{SW+3}], s37 offen')
        A(f'v_dot2_f32_bf16 v{32+m}, v{16+4*m}, v10, 0')
        for j in range(1, 4):
            A(f'v_dot2_f32_bf16 v{32+m}, v{16+4*m+j}, v10, v{32+m}')
    A('s_lshl_b32 s36, s3, 10')
    A('s_add_u32 s36, s36, 40960')
    A('v_lshlrev_b32 v11, 2, v2')
    A('v_add_u32 v11, s36, v11')
    A('s_nop 1')
    for m in range(4):
        A(f'ds_write_b32 v11, v{32+m} offset:{256*m}')
    A('s_waitcnt lgkmcnt(0)')
    A('s_barrier')
    A('s_cmp_ge_u32 s3, 2')
    A('s_cbranch_scc1 prep_done')
    A('v_lshrrev_b32 v12, 5, v0')
    A('v_and_b32 v13, 31, v0')
    A('v_lshlrev_b32 v12, 8, v12')
    A('v_lshl_add_u32 v12, v13, 2, v12')
    A('v_add_u32 v14, 40960, v12')
    for w in range(8):
        for h in range(2):
            A(f'ds_read_b32 v{16+2*w+h}, v14 offset:{1024*w+128*h}')
        if w == 3: A('s_waitcnt lgkmcnt(4)')
    A('s_waitcnt lgkmcnt(0)')
    for i in range(1, 16):
        A(f'v_add_f32 v16, v16, v{16+i}')
    A('s_mul_i32 s36, s32, 12288')
    A('s_lshl_b32 s37, s31, 9')
    A('s_add_u32 s36, s36, s37')
    A(f's_add_u32 s36, s36, {WS_CS}')
    A('v_lshlrev_b32 v15, 2, v0')
    A(f'buffer_store_dword v16, v15, s[{SW}:{SW+3}], s36 offen')
    A('s_branch prep_done')
    A('prep_sk:')
    for j in range(5):
        A(f'v_add_u32 v6, {64*j}, v2')
        A(f'v_mul_u32_u24 v{40+j}, 6554, v6')
        A(f'v_lshrrev_b32 v{40+j}, 16, v{40+j}')
        A(f'v_mul_u32_u24 v7, 10, v{40+j}')
        A(f'v_sub_u32 v{48+j}, v6, v7')
    A('s_cmp_ge_u32 s2, 168')
    A('s_cbranch_scc1 prep_wo')
    A('s_sub_u32 s31, s2, 120')
    A('s_lshl_b32 s31, s31, 3')
    A('s_add_u32 s31, s31, s3')
    div_magic(A, 32, 31, 48)
    A('s_mul_i32 s33, s32, 48')
    A('s_sub_u32 s33, s31, s33')
    srd(A, SA, 12, 1536*640*2)
    A('s_mul_i32 s34, s31, 5120')
    A(f's_add_u32 s34, s34, {WS_WD}')
    A('s_lshl_b32 s35, s33, 5')
    for j in range(5):
        A(f'v_add_u32 v{40+j}, s35, v{40+j}')
    A('s_branch prep_sk2')
    A('prep_wo:')
    A('s_sub_u32 s31, s2, 168')
    A('s_lshl_b32 s31, s31, 3')
    A('s_add_u32 s31, s31, s3')
    div_magic(A, 32, 31, 20)
    A('s_mul_i32 s33, s32, 20')
    A('s_sub_u32 s33, s31, s33')
    srd(A, SA, 4, 640*640*2)
    A('s_mul_i32 s34, s31, 5120')
    A(f's_add_u32 s34, s34, {WS_WO}')
    A('s_cmp_ge_u32 s33, 16')
    A('s_cbranch_scc1 prep_wo_rem')
    A('s_mul_i32 s35, s33, 40')
    for j in range(5):
        A(f'v_lshrrev_b32 v6, 4, v{40+j}')
        A(f'v_lshl_add_u32 v{40+j}, v6, 2, v{40+j}')
        A(f'v_add_u32 v{40+j}, s35, v{40+j}')
    A('s_branch prep_sk2')
    A('prep_wo_rem:')
    A('s_sub_u32 s35, s33, 16')
    A('s_mul_i32 s35, s35, 160')
    A('s_add_u32 s35, s35, 16')
    for j in range(5):
        A(f'v_bfe_u32 v6, v{40+j}, 4, 1')
        A(f'v_bfe_u32 v7, v{40+j}, 2, 1')
        A(f'v_lshl_add_u32 v6, v6, 1, v7')
        A(f'v_bfe_u32 v7, v{40+j}, 3, 1')
        A(f'v_lshl_add_u32 v6, v6, 1, v7')
        A(f'v_mul_u32_u24 v6, 20, v6')
        A(f'v_and_b32 v7, 3, v{40+j}')
        A(f'v_add3_u32 v{40+j}, v6, v7, s35')
    A('prep_sk2:')
    A('s_mul_i32 s35, s32, 160')
    for j in range(5):
        A(f'v_mul_u32_u24 v{40+j}, 1280, v{40+j}')
        A(f'v_lshl_add_u32 v{40+j}, v{48+j}, 4, v{40+j}')
    for j in range(5):
        A(f's_add_u32 s36, s30, {1024*j}')
        A('s_mov_b32 m0, s36')
        A('s_nop 0')
        A(f'buffer_load_dwordx4 v{40+j}, s[{SA}:{SA+3}], s35 offen lds')
    A('v_lshrrev_b32 v6, 1, v5')
    A('v_and_b32 v7, 1, v5')
    A('v_lshl_add_u32 v6, v6, 2, v7')
    A('v_lshl_add_u32 v6, v6, 2, v4')
    A('v_mul_u32_u24 v6, 160, v6')
    A('v_add_u32 v6, s30, v6')
    A('v_lshl_add_u32 v8, v3, 4, v6')
    A('v_lshl_add_u32 v7, v3, 3, v6')
    A('v_lshlrev_b32 v9, 4, v2')
    A('s_waitcnt vmcnt(0)')
    for F in range(5):
        ar, co = ('v8', 64*(F//2) + 8*(F%2)) if F < 4 else ('v7', 128)
        A(f'ds_read_b64_tr_b16 v[{16+4*F}:{17+4*F}], {ar} offset:{co}')
        A(f'ds_read_b64_tr_b16 v[{18+4*F}:{19+4*F}], {ar} offset:{co+1280}')
    A('s_add_u32 s36, s34, 4096')
    A('s_waitcnt lgkmcnt(0)')
    for F in range(4):
        A(f'buffer_store_dwordx4 v[{16+4*F}:{19+4*F}], v9, s[{SW}:{SW+3}], s34 offen offset:{1024*F}')
    A(f'buffer_store_dwordx4 v[32:35], v9, s[{SW}:{SW+3}], s36 offen')
    A('prep_done:')
    A('s_endpgm')
    return name, A.text(), kernel_desc(name, 64), (256, 512, 49152)

def split_hilo(A, src, hi, lo, t):
    A(f'v_and_b32 v{hi}, 0xffff0000, v{src}')
    A(f'v_sub_f32 v{lo}, v{src}, v{hi}')

def ln_stats(A, s1, s2, mean, rstd, t):
    A(f'v_mul_f32 v{mean}, {f2u(1/640):#x}, v{s1}')
    A(f'v_mul_f32 v{t}, v{mean}, v{mean}')
    A(f'v_mul_f32 v{rstd}, {f2u(1/640):#x}, v{s2}')
    A(f'v_sub_f32 v{rstd}, v{rstd}, v{t}')
    A(f'v_max_f32 v{rstd}, 0, v{rstd}')
    A(f'v_add_f32 v{rstd}, {f2u(1e-5):#x}, v{rstd}')
    A(f'v_rsq_f32 v{rstd}, v{rstd}')

def ext_tok(A, mean, dst, t0, t1, hmask):
    A(f'v_sub_f32 v{t0}, 0, v{mean}')
    A(f'v_cndmask_b32_e64 v{t0}, 0, v{t0}, s[{hmask}:{hmask+1}]')
    A(f'v_and_b32 v{t1}, 0xffff0000, v{t0}')
    A(f'v_sub_f32 v{t0}, v{t0}, v{t1}')
    A(f'v_cvt_pk_bf16_f32 v{dst}, v{t1}, v{t1}')
    A(f'v_cvt_pk_bf16_f32 v{dst+1}, v{t0}, v{t0}')

def ext_feat(A, cs, dst, t0, t1):
    A(f'v_and_b32 v{t1}, 0xffff0000, v{cs}')
    A(f'v_sub_f32 v{t0}, v{cs}, v{t1}')
    A(f'v_cvt_pk_bf16_f32 v{dst}, v{t1}, v{t0}')
    A(f'v_mov_b32 v{dst+1}, v{dst}')

def gen_qkv():
    A = Asm()
    name = 'qkv_kernel'
    A(kernel_header(name))
    SX, SWT, SW = 16, 20, 24
    NS = 4; STG = 32768; NST = 10
    LST = NS * STG
    A('s_cmp_ge_u32 s2, 240')
    A('s_cbranch_scc1 qkv_done')
    A('s_load_dwordx4 s[4:7], s[0:1], 0')
    A('s_load_dwordx2 s[24:25], s[0:1], 72')
    A('v_lshrrev_b32 v1, 6, v0')
    A('v_and_b32 v2, 63, v0')
    A('v_readfirstlane_b32 s3, v1')
    A('s_and_b32 s8, s2, 7')
    A('s_lshr_b32 s9, s2, 3')
    A('s_lshr_b32 s10, s8, 1')
    A('s_and_b32 s11, s8, 1')
    A('s_lshl_b32 s30, s10, 2')
    A('s_lshr_b32 s31, s9, 2')
    A('s_lshl_b32 s12, s11, 3')
    A('s_add_u32 s31, s31, s12')
    A('s_and_b32 s12, s9, 3')
    A('s_lshl_b32 s13, s11, 1')
    A('s_add_u32 s13, s13, s12')
    A('s_cmp_ge_u32 s9, 28')
    A('s_cselect_b32 s31, 7, s31')
    A('s_cselect_b32 s12, s13, s12')
    A('s_add_u32 s30, s30, s12')
    A('s_waitcnt lgkmcnt(0)')
    srd(A, SX, 4, 2048*640*2)
    srd(A, SWT, 6, 640*1920*2)
    srd(A, SW, 24, WS_SIZE)
    A('s_cmp_lt_u32 s3, 4')
    A('s_cbranch_scc1 qkv_compute')
    A('s_sub_u32 s32, s3, 4')
    A('s_lshl_b32 s33, s30, 7')
    A('s_lshl_b32 s34, s32, 5')
    A('s_add_u32 s33, s33, s34')
    A('v_lshrrev_b32 v3, 3, v2')
    A('v_lshrrev_b32 v4, 4, v2')
    A('v_and_b32 v5, 7, v2')
    for j in range(4):
        A(f'v_add_u32 v6, {8*j}, v3')
        A('v_add_u32 v6, s33, v6')
        A('v_mul_u32_u24 v6, 1280, v6')
        A(f'v_add_u32 v7, {(4*j)&7}, v4')
        A('v_xor_b32 v7, v5, v7')
        A(f'v_lshl_add_u32 v{10+j}, v7, 4, v6')
        if j: A(f'v_subrev_u32 v{10+j}, {1024*j}, v{10+j}')
    A('s_lshl_b32 s34, s32, 4')
    A('s_lshl_b32 s35, s31, 8')
    A('v_and_b32 v5, 15, v2')
    A('v_lshlrev_b32 v7, 2, v4')
    A('v_xor_b32 v5, v5, v7')
    A('v_lshlrev_b32 v5, 4, v5')
    A('v_add_u32 v5, s35, v5')
    for j in range(4):
        A(f'v_add_u32 v6, {4*j}, v4')
        A('v_add_u32 v6, s34, v6')
        A('v_mul_u32_u24 v6, 3840, v6')
        A(f'v_add_u32 v{14+j}, v5, v6')
        if j: A(f'v_subrev_u32 v{14+j}, {1024*j}, v{14+j}')
    A('s_lshl_b32 s36, s32, 12')
    A('s_mov_b32 s37, 0')
    A('s_mov_b32 s38, 0')
    def issue(slot):
        A(f's_add_u32 s39, s36, {slot*STG}')
        A('s_mov_b32 m0, s39')
        A(f's_add_u32 s39, s36, {slot*STG+16384}')
        for j in range(4):
            A(f'buffer_load_dwordx4 v{10+j}, s[{SX}:{SX+3}], s37 offen offset:{1024*j} lds')
        A('s_mov_b32 m0, s39')
        A('s_add_u32 s37, s37, 128')
        for j in range(4):
            A(f'buffer_load_dwordx4 v{14+j}, s[{SWT}:{SWT+3}], s38 offen offset:{1024*j} lds')
        A(f's_add_u32 s38, s38, {64*3840}')
    for st in range(NS): issue(st)
    for st in range(NST):
        issued = min(NST, NS + max(0, st - 1))
        A(f's_waitcnt vmcnt({8*(issued - st - 1)})')
        A('s_barrier')
        if st >= 1 and st + NS - 1 < NST:
            issue((st - 1) % NS)
    A('s_endpgm')

    A('qkv_compute:')
    R = Alloc(8, 256)
    vA = [[R() for _ in range(4)] for _ in range(2)]
    vB = [R() for _ in range(2)]
    vSt = [R() for _ in range(8)]
    sx = R(2); sxx = sx + 1; cs, ones = R(), R()
    X = [[R(4, 4) for _ in range(2)] for _ in range(2)]
    W = [[R(4, 4) for _ in range(2)] for _ in range(2)]
    acc = [[R(16, 4) for _ in range(2)] for _ in range(2)]
    T = R(40, 4)
    stamp(A, 1, 0, SW, T)
    A('s_and_b32 s32, s3, 1')
    A('s_lshr_b32 s33, s3, 1')
    A('v_and_b32 v3, 31, v2')
    A('v_lshrrev_b32 v4, 5, v2')
    A('v_bfe_u32 v5, v2, 1, 3')
    A('v_xor_b32 v5, v4, v5')
    A('v_lshlrev_b32 v5, 4, v5')
    A('v_lshl_add_u32 v5, v3, 7, v5')
    A('s_lshl_b32 s34, s32, 1')
    A('s_add_u32 s44, s34, s33')
    A('s_xor_b32 s45, s44, 1')
    A('s_lshl_b32 s34, s33, 1')
    A('s_add_u32 s46, s34, s32')
    A('s_xor_b32 s47, s46, 1')
    for tt in range(2):
        A(f's_lshl_b32 s34, s{44+tt}, 12')
        A(f'v_add_u32 v{vA[tt][0]}, s34, v5')
        for s_ in range(1, 4):
            A(f'v_xor_b32 v{vA[tt][s_]}, {32*s_}, v{vA[tt][0]}')
    A('v_bfe_u32 v5, v2, 2, 2')
    A('v_lshl_add_u32 v6, v4, 3, v5')
    A('v_lshlrev_b32 v6, 8, v6')
    A('v_bfe_u32 v7, v2, 4, 1')
    A('v_lshl_add_u32 v6, v7, 5, v6')
    A('v_and_b32 v7, 3, v2')
    A('v_lshl_add_u32 v6, v7, 3, v6')
    A('v_add_u32 v6, 16384, v6')
    for ft in range(2):
        A(f'v_xor_b32 v7, s{46+ft}, v5')
        A(f'v_lshl_add_u32 v{vB[ft]}, v7, 6, v6')
    A(f'v_mov_b32 v{sx}, 0'); A(f'v_mov_b32 v{sxx}, 0'); A(f'v_mov_b32 v{cs}, 0')
    A(f'v_mov_b32 v{ones}, {ONES:#x}')
    for i in range(64): A(f'v_mov_b32 v{acc[0][0]+i}, 0')
    A('s_mov_b32 s40, -1'); A('s_mov_b32 s41, 0')
    A('s_lshl_b32 s42, s30, 2')
    A('s_cmp_ge_u32 s31, 10')
    A('s_cbranch_scc1 qkv_vpath')

    def reads(buf, slot, s_):
        o = (slot & 1) * STG
        r = []
        for tt in range(2):
            r.append(f'ds_read_b128 {v(X[buf][tt],4)}, v{vA[tt][s_]} offset:{o}')
        for ft in range(2):
            for jh in range(2):
                r.append(f'ds_read_b64_tr_b16 {v(W[buf][ft]+2*jh,2)}, v{vB[ft]} offset:{o + s_*4096 + jh*1024}')
        return r
    def mfmas(buf, vpath):
        r = []
        for tt in range(2):
            for ft in range(2):
                a_, b_ = (X[buf][tt], W[buf][ft]) if vpath else (W[buf][ft], X[buf][tt])
                r.append(f'v_mfma_f32_32x32x16_bf16 {v(acc[tt][ft],16)}, {v(a_,4)}, {v(b_,4)}, {v(acc[tt][ft],16)}')
        return r
    def mainloop(vpath, tag):
        A('s_mov_b32 s48, 5')
        A('s_barrier')
        stamp(A, 1, 1, SW, T)
        for x in reads(0, 0, 0): A(x)
        A(f'qkv_loop_{tag}:')
        for st in range(2):
            for s_ in range(4):
                buf = s_ & 1
                A('s_waitcnt lgkmcnt(0)')
                fill = []
                if s_ == 3:
                    A('s_barrier')
                    if st == 1:
                        fill += [f'v_xor_b32 v{r_}, 0x10000, v{r_}' for r_ in [vA[0][0], vA[1][0]] + vB]
                    fill += reads(buf ^ 1, st + 1, 0)
                    if st == 1:
                        fill += [f'v_xor_b32 v{r_}, 0x10000, v{r_}' for r_ in vA[0][1:] + vA[1][1:]]
                else:
                    fill += reads(buf ^ 1, st, s_ + 1)
                for x in interleave(mfmas(buf, vpath), fill): A(x)
                for j in range(4):
                    A(f'v_dot2_f32_bf16 v{sx}, v{X[buf][0]+j}, v{ones}, v{sx}')
                    A(f'v_dot2_f32_bf16 v{sxx}, v{X[buf][0]+j}, v{X[buf][0]+j}, v{sxx}')
                    A(f'v_dot2_f32_bf16 v{cs}, v{W[buf][0]+j}, v{ones}, v{cs}')
        A('s_sub_u32 s48, s48, 1')
        A('s_cmp_lg_u32 s48, 0')
        A(f's_cbranch_scc1 qkv_loop_{tag}')
        stamp(A, 1, 2, SW, T)
    mean = [T+0, T+1]; rstd = [T+2, T+3]; csf = [T+4, T+5]
    EX = [T+8, T+10]; EW = [T+12, T+14]
    def stats_exchange(vpath):
        A('s_lshl_b32 s34, s44, 9')
        A(f's_add_u32 s34, s34, {LST}')
        A('v_lshlrev_b32 v5, 4, v3')
        A('v_lshl_add_u32 v6, v4, 3, v5')
        A('v_add_u32 v6, s34, v6')
        A(f'ds_write_b64 v6, v[{sx}:{sx+1}]')
        A('s_lshl_b32 s34, s46, 8')
        A(f's_add_u32 s34, s34, {LST+2048}')
        A('v_lshlrev_b32 v7, 3, v3')
        A('v_lshl_add_u32 v6, v4, 2, v7')
        A('v_add_u32 v6, s34, v6')
        A(f'ds_write_b32 v6, v{cs}')
        A('s_waitcnt lgkmcnt(0)')
        A('s_barrier')
        for tt in range(2):
            A(f's_lshl_b32 s34, s{44+tt}, 9')
            A(f's_add_u32 s34, s34, {LST}')
            A('v_add_u32 v6, s34, v5')
            A(f'ds_read_b128 {v(T+16+4*tt,4)}, v6')
        for ft in range(2):
            A(f's_lshl_b32 s34, s{46+ft}, 8')
            A(f's_add_u32 s34, s34, {LST+2048}')
            A('v_add_u32 v6, s34, v7')
            A(f'ds_read_b64 {v(T+24+2*ft,2)}, v6')
        A('s_waitcnt lgkmcnt(0)')
        for tt in range(2):
            b = T+16+4*tt
            A(f'v_add_f32 v{b}, v{b}, v{b+2}')
            A(f'v_add_f32 v{b+1}, v{b+1}, v{b+3}')
            ln_stats(A, b, b+1, mean[tt], rstd[tt], b+2)
            ext_tok(A, mean[tt], EX[tt], b+2, b+3, 40)
        for ft in range(2):
            b = T+24+2*ft
            A(f'v_add_f32 v{csf[ft]}, v{b}, v{b+1}')
            ext_feat(A, csf[ft], EW[ft], b, b+1)
        A('s_nop 1')
        for tt in range(2):
            for ft in range(2):
                a_, b_ = (EX[tt], EW[ft]) if vpath else (EW[ft], EX[tt])
                A(f'v_mfma_f32_32x32x8bf16_1k {v(acc[tt][ft],16)}, {v(a_,2)}, {v(b_,2)}, {v(acc[tt][ft],16)}')

    A('s_cmp_ge_u32 s31, 5')
    A('s_cselect_b32 s34, 5, 0')
    A('s_mov_b32 s35, 81920'); A('s_cmov_b32 s35, 163840')
    A('s_mov_b32 s36, 1280'); A('s_cmov_b32 s36, 2560')
    A(f's_cselect_b32 s37, {WS_KV}, {WS_Q}')
    A(f's_cselect_b32 s49, {f2u(1.0):#x}, {f2u(QSCALE):#x}')
    A('s_sub_u32 s34, s31, s34')
    A('s_lshl_b32 s34, s34, 5')
    for ft in range(2):
        A(f's_lshl_b32 s38, s{46+ft}, 3')
        A('s_add_u32 s38, s38, s34')
        for q in range(4):
            d = vSt[ft*4+q]
            A(f'v_add_u32 v5, {2*q}, v4')
            A('v_add_u32 v5, s38, v5')
            A('v_mul_u32_u24 v6, 205, v5')
            A('v_lshrrev_b32 v6, 10, v6')
            A('v_mul_u32_u24 v7, 5, v6')
            A('v_sub_u32 v5, v5, v7')
            A('v_mul_lo_u32 v6, v6, s35')
            A('v_lshl_add_u32 v6, v5, 8, v6')
            A(f'v_lshl_add_u32 v{d}, v3, 3, v6')
    for tt in range(2):
        A(f's_add_u32 s38, s42, s{44+tt}')
        A('s_mul_i32 s38, s38, s36')
        A(f's_add_u32 s{50+tt}, s38, s37')
    mainloop(False, 'qk')
    stats_exchange(False)
    for tt in range(2):
        A(f'v_mul_f32 v{rstd[tt]}, s49, v{rstd[tt]}')
    A('s_nop 7')
    k = 0
    for tt in range(2):
        for ft in range(2):
            for q in range(4):
                b = acc[tt][ft] + 4*q
                for i in range(4): A(f'v_mul_f32 v{b+i}, v{rstd[tt]}, v{b+i}')
                d = T + 16 + 2*(k % 8); k += 1
                A(f'v_cvt_pk_bf16_f32 v{d}, v{b}, v{b+1}')
                A(f'v_cvt_pk_bf16_f32 v{d+1}, v{b+2}, v{b+3}')
                A(f'buffer_store_dwordx2 {v(d,2)}, v{vSt[ft*4+q]}, s[{SW}:{SW+3}], s{50+tt} offen')
    stamp(A, 1, 3, SW, T)
    A('s_endpgm')
    A('qkv_vpath:')
    A('s_sub_u32 s34, s31, 10')
    A('s_lshl_b32 s34, s34, 7')
    A('s_mov_b32 s35, 163840')
    for ft in range(2):
        A(f's_lshl_b32 s38, s{46+ft}, 5')
        A('s_add_u32 s38, s38, s34')
        A('v_add_u32 v5, s38, v3')
        A('v_mul_u32_u24 v6, 3277, v5')
        A('v_lshrrev_b32 v6, 16, v6')
        A('v_mul_u32_u24 v7, 20, v6')
        A('v_sub_u32 v5, v5, v7')
        A('v_mul_lo_u32 v6, v6, s35')
        A('v_lshl_add_u32 v6, v5, 4, v6')
        A('v_mul_u32_u24 v7, 320, v4')
        A(f'v_add_u32 v{vSt[ft]}, v6, v7')
    for tt in range(2):
        A(f's_add_u32 s38, s42, s{44+tt}')
        A('s_mul_i32 s38, s38, 2560')
        A(f's_add_u32 s{50+tt}, s38, {WS_KV+1280}')
    mainloop(True, 'v')
    stats_exchange(True)
    A('s_lshl_b32 s34, s3, 8')
    A(f's_add_u32 s34, s34, {LST+3072}')
    A('v_lshlrev_b32 v5, 2, v3')
    A('v_add_u32 v5, s34, v5')
    A(f'ds_write_b32 v5, v{rstd[0]}')
    A(f'ds_write_b32 v5, v{rstd[1]} offset:128')
    A('v_lshlrev_b32 v5, 4, v4')
    A('v_add_u32 v5, s34, v5')
    RS = X[0][0]
    for tt in range(2):
        for q in range(4):
            A(f'ds_read_b128 {v(RS+16*tt+4*q,4)}, v5 offset:{128*tt+32*q}')
    A('s_waitcnt lgkmcnt(0)')
    A('s_nop 7')
    k = 0
    for tt in range(2):
        for ft in range(2):
            for m in range(2):
                b = acc[tt][ft] + 8*m
                for i in range(8): A(f'v_mul_f32 v{b+i}, v{RS+16*tt+8*m+i}, v{b+i}')
                d = T + 16 + 4*(k % 4); k += 1
                for i in range(4): A(f'v_cvt_pk_bf16_f32 v{d+i}, v{b+2*i}, v{b+2*i+1}')
                A(f'buffer_store_dwordx4 {v(d,4)}, v{vSt[ft]}, s[{SW}:{SW+3}], s{50+tt} offen offset:{640*m}')
    stamp(A, 1, 3, SW, T)
    A('qkv_done:')
    A('s_endpgm')
    return name, A.text(), kernel_desc(name, R.hi), (240, 512, LST + 4096)

def gen_att():
    A = Asm()
    name = 'att_kernel'
    A(kernel_header(name))
    SW = 16
    SLOT = 32768; XCH = 65536
    R = Alloc(8, 256)
    Q16 = [R(4, 4) for _ in range(2)]; Q8 = [R(2) for _ in range(2)]
    C = [R(16, 4) for _ in range(2)]
    S = [R(16, 4) for _ in range(2)]
    P = [R(8, 4) for _ in range(2)]
    O = [R(16, 4) for _ in range(2)]
    K16 = [R(4, 4) for _ in range(2)]; K8 = [R(2) for _ in range(2)]
    V = [R(8, 4) for _ in range(2)]
    aK, aK8, aV, vL16 = R(), R(), R(), R()
    T = R(8, 4)
    A('s_cmp_ge_u32 s2, 256')
    A('s_cbranch_scc1 att_done')
    A('s_load_dwordx2 s[16:17], s[0:1], 72')
    A('v_lshrrev_b32 v1, 6, v0')
    A('v_and_b32 v2, 63, v0')
    A('v_readfirstlane_b32 s3, v1')
    A('s_and_b32 s8, s2, 7')
    A('s_lshr_b32 s9, s2, 3')
    A('s_lshl_b32 s30, s8, 2')
    A('s_and_b32 s10, s9, 3')
    A('s_add_u32 s30, s30, s10')
    A('s_lshr_b32 s31, s9, 2')
    A('s_and_b32 s32, s3, 3')
    A('s_lshr_b32 s33, s3, 2')
    A('s_lshl_b32 s34, s31, 3')
    A('s_lshl_b32 s35, s32, 1')
    A('s_add_u32 s34, s34, s35')
    A('v_and_b32 v3, 31, v2')
    A('v_lshrrev_b32 v4, 5, v2')
    A(f'v_lshlrev_b32 v{vL16}, 4, v2')
    A('s_mov_b32 s40, -1'); A('s_mov_b32 s41, 0')
    A('s_mov_b32 s42, 0xfffff'); A('s_mov_b32 s43, 0xfffff')
    A('s_mul_i32 s36, s30, 163840')
    A(f's_add_u32 s36, s36, {WS_KV}')
    A('s_lshl_b32 s37, s33, 5')
    A('s_add_u32 s37, s37, s32')
    A('s_mul_i32 s37, s37, 2560')
    A('s_add_u32 s37, s37, s36')
    A('s_mul_i32 s38, s3, 2560')
    A('s_waitcnt lgkmcnt(0)')
    srd(A, SW, 16, WS_SIZE)
    stamp(A, 2, 0, SW, T)
    def dma():
        A('s_mov_b32 m0, s38')
        A('s_xor_b32 s38, s38, %d' % SLOT)
        A(f'buffer_load_dwordx4 v{vL16}, s[{SW}:{SW+3}], s37 offen lds')
        A(f'buffer_load_dwordx4 v{vL16}, s[{SW}:{SW+3}], s37 offen offset:1024 lds')
        A('s_mov_b64 exec, s[40:41]')
        A(f'buffer_load_dwordx4 v{vL16}, s[{SW}:{SW+3}], s37 offen offset:2048 lds')
        A('s_mov_b64 exec, -1')
        A('s_add_u32 s37, s37, 10240')
    dma()
    A('s_mul_i32 s39, s30, 64')
    A('s_add_u32 s39, s39, s34')
    A('s_mul_i32 s39, s39, 1280')
    A(f's_add_u32 s39, s39, {WS_Q}')
    A('v_lshlrev_b32 v5, 3, v2')
    for x in range(2):
        A(f'v_mov_b32 v{Q8[x]}, 0'); A(f'v_mov_b32 v{Q8[x]+1}, 0')
    for x in range(2):
        A(f'buffer_load_dwordx2 {v(Q16[x],2)}, v5, s[{SW}:{SW+3}], s39 offen offset:{1280*x}')
        A(f'buffer_load_dwordx2 {v(Q16[x]+2,2)}, v5, s[{SW}:{SW+3}], s39 offen offset:{1280*x+512}')
    A('s_mov_b64 exec, s[40:41]')
    for x in range(2):
        A(f'buffer_load_dwordx2 {v(Q8[x],2)}, v5, s[{SW}:{SW+3}], s39 offen offset:{1280*x+1024}')
    A('s_mov_b64 exec, -1')
    dma()
    A('s_mul_i32 s44, s33, 10240')
    A('v_lshlrev_b32 v6, 3, v3')
    A(f'v_add_u32 v{aK}, s44, v5')
    A(f'v_add_u32 v{aK8}, s44, v6')
    A('v_mul_u32_u24 v7, 320, v4')
    A('v_lshl_add_u32 v7, v3, 4, v7')
    A(f'v_add_u32 v{aV}, s44, v7')
    for b in range(2):
        for i in range(8): A(f'v_mov_b32 v{V[b]+i}, {ONES:#x}')
    for x in range(2):
        for i in range(16): A(f'v_mov_b32 v{O[x]+i}, 0')
    for i in range(4): A(f'v_mov_b32 v{P[1]+4+i}, 0')
    A('s_waitcnt vmcnt(3)')
    A('s_barrier')
    stamp(A, 2, 1, SW, T)
    A(f'ds_read2st64_b64 {v(K16[1],4)}, v5 offset0:0 offset1:1')
    A(f'ds_read_b64 {v(K8[1],2)}, v6 offset:1024')
    A(f'ds_read2st64_b64 {v(K16[0],4)}, v{aK} offset0:0 offset1:1')
    A(f'ds_read_b64 {v(K8[0],2)}, v{aK8} offset:1024')
    A('s_mov_b64 exec, s[42:43]')
    A(f'ds_read_b128 {v(V[0],4)}, v{aV} offset:1280')
    A(f'ds_read_b128 {v(V[0]+4,4)}, v{aV} offset:1920')
    A('s_mov_b64 exec, -1')
    A('s_waitcnt lgkmcnt(4)')
    for x in range(2):
        A(f'v_mfma_f32_32x32x16_bf16 {v(S[x],16)}, {v(K16[1],4)}, {v(Q16[x],4)}, 0')
    for x in range(2):
        A(f'v_mfma_f32_32x32x8bf16_1k {v(S[x],16)}, {v(K8[1],2)}, {v(Q8[x],2)}, {v(S[x],16)}')
    A('s_nop 15')
    def rowmax(dst, src, t):
        A(f'v_max3_f32 v{dst}, v{src}, v{src+1}, v{src+2}')
        for i in range(3, 15, 2):
            A(f'v_max3_f32 v{dst}, v{src+i}, v{src+i+1}, v{dst}')
        A(f'v_max_f32 v{dst}, v{src+15}, v{dst}')
        A(f'v_mov_b32 v{t}, v{dst}')
        A('s_nop 1')
        A(f'v_permlane32_swap_b32 v{dst}, v{t}')
        A(f'v_max_f32 v{dst}, v{dst}, v{t}')
    for x in range(2):
        rowmax(T, S[x], T+1)
        for i in range(16): A(f'v_sub_f32 v{C[x]+i}, 0, v{T}')
    A('s_waitcnt lgkmcnt(0)')
    A(f'v_mfma_f32_32x32x16_bf16 {v(S[0],16)}, {v(K16[0],4)}, {v(Q16[0],4)}, {v(C[0],16)}')
    A(f'v_mfma_f32_32x32x8bf16_1k {v(S[0],16)}, {v(K8[0],2)}, {v(Q8[0],2)}, {v(S[0],16)}')
    if 'prio1' in OPT:
        A('s_cmp_eq_u32 s33, 0'); A('s_cbranch_scc1 att_np'); A('s_setprio 1'); A('att_np:')
    if 'solo' in OPT:
        A('s_cmp_eq_u32 s33, 0'); A('s_cbranch_scc0 att_done')
    A('s_mov_b32 s45, 0')
    A('s_nop 15')
    A('s_branch att_loop')
    A('.p2align 6')
    A('att_loop:')
    for tl in range(4):
        for x in range(2):
            cur, nxt = S[x], S[x ^ 1]
            kb = (tl + x) & 1
            e = lambda i: f'v_exp_f32 v{cur+i}, v{cur+i}'
            c = lambda j: f'v_cvt_pk_bf16_f32 v{P[x]+j}, v{cur+2*j}, v{cur+2*j+1}'
            if tl == 3 and x == 0:
                A('s_waitcnt vmcnt(0) lgkmcnt(0)')
                if 'nobar' not in OPT: A('s_barrier')
                A('s_cmp_ge_u32 s45, 6')
                A('s_cbranch_scc1 att_nodma')
                dma()
                A('att_nodma:')
                A(f'v_xor_b32 v{aK}, {SLOT}, v{aK}')
                A(f'v_xor_b32 v{aK8}, {SLOT}, v{aK8}')
            else:
                A('s_waitcnt lgkmcnt(0)')
            if tl == 3 and x == 1:
                A(f'v_xor_b32 v{aV}, {SLOT}, v{aV}')
            A(f'v_mfma_f32_32x32x16_bf16 {v(nxt,16)}, {v(K16[kb],4)}, {v(Q16[x^1],4)}, {v(C[x^1],16)}')
            tn = (tl + 1) & 3
            if 'nods' in OPT: pass
            elif x == 0:
                A(f'ds_read2st64_b64 {v(K16[(tl+1)&1],4)}, v{aK} offset0:{tn*5} offset1:{tn*5+1}')
            else:
                if 'noexec' not in OPT: A('s_mov_b64 exec, s[42:43]')
                A(f'ds_read_b128 {v(V[(tl+1)&1],4)}, v{aV} offset:{tn*2560+1280}')
                A(f'ds_read_b128 {v(V[(tl+1)&1]+4,4)}, v{aV} offset:{tn*2560+1920}')
                if 'noexec' not in OPT: A('s_mov_b64 exec, -1')
            for y in (e(0), e(1), e(2), c(0), e(3)): A(y)
            A(f'v_mfma_f32_32x32x8bf16_1k {v(nxt,16)}, {v(K8[kb],2)}, {v(Q8[x^1],2)}, {v(nxt,16)}')
            for y in (e(4), c(1), e(5), e(6), c(2), e(7)): A(y)
            vprev = V[tl & 1] if x == 1 else V[(tl - 1) & 1]
            A(f'v_mfma_f32_32x32x16_bf16 {v(O[x^1],16)}, {v(vprev+4,4)}, {v(P[x^1]+4,4)}, {v(O[x^1],16)}')
            if x == 0 and 'nods' not in OPT:
                A(f'ds_read_b64 {v(K8[(tl+1)&1],2)}, v{aK8} offset:{tn*2560+1024}')
            for y in (e(8), c(3), e(9), e(10), c(4), e(11)): A(y)
            A(f'v_mfma_f32_32x32x16_bf16 {v(O[x],16)}, {v(V[tl&1],4)}, {v(P[x],4)}, {v(O[x],16)}')
            if tl == 3 and x == 1:
                A('s_add_u32 s45, s45, 1')
            for y in (e(12), c(5), e(13), e(14), e(15), c(6), c(7)): A(y)
    A('s_cmp_lt_u32 s45, 8')
    A('s_cbranch_scc1 att_loop')
    A('s_nop 0')
    A(f'v_mfma_f32_32x32x16_bf16 {v(O[1],16)}, {v(V[1]+4,4)}, {v(P[1]+4,4)}, {v(O[1],16)}')
    stamp(A, 2, 2, SW, T)
    A('s_lshl_b32 s46, s3, 12')
    A(f's_add_u32 s46, s46, {XCH}')
    A(f'v_add_u32 v5, s46, v{vL16}')
    A('v_xor_b32 v6, 0x4000, v5')
    A('s_nop 15')
    A('s_cmp_eq_u32 s33, 0')
    A('s_cbranch_scc1 att_x0')
    for q in range(4): A(f'ds_write_b128 v5, {v(O[0]+4*q,4)} offset:{1024*q}')
    A('s_waitcnt lgkmcnt(0)')
    for i in range(13): A(f'v_mov_b32 v{O[0]+i}, v{O[1]+i}')
    for i in range(4): A(f'v_mov_b32 v{Q16[0]+i}, v{Q16[1]+i}')
    for i in range(2): A(f'v_mov_b32 v{Q8[0]+i}, v{Q8[1]+i}')
    A('s_branch att_x1')
    A('att_x0:')
    for q in range(4): A(f'ds_write_b128 v5, {v(O[1]+4*q,4)} offset:{1024*q}')
    A('s_waitcnt lgkmcnt(0)')
    A('att_x1:')
    A('s_barrier')
    for q in range(4): A(f'ds_read_b128 {v(S[0]+4*q,4)}, v6 offset:{1024*q}')
    A('s_add_u32 s34, s34, s33')
    A('s_mul_i32 s47, s34, 40960')
    A(f's_add_u32 s47, s47, {WS_O}')
    A('s_lshl_b32 s48, s30, 10')
    A('s_add_u32 s48, s48, s47')
    A('s_lshr_b32 s49, s30, 1')
    A('s_lshl_b32 s49, s49, 9')
    A('s_and_b32 s50, s30, 1')
    A('s_lshl_b32 s50, s50, 3')
    A('s_add_u32 s49, s49, s50')
    A('s_add_u32 s49, s49, s47')
    A('s_add_u32 s49, s49, 32768')
    A(f's_mov_b32 s51, {f2u(2.0**40):#x}')
    A('s_waitcnt lgkmcnt(0)')
    for i in range(13): A(f'v_add_f32 v{O[0]+i}, v{O[0]+i}, v{S[0]+i}')
    A(f'v_cmp_nle_f32 vcc, v{O[0]+12}, s51')
    A('s_nop 4')
    A('s_cbranch_vccnz att_slow')
    A('att_fin:')
    A(f'v_rcp_f32 v{T}, v{O[0]+12}')
    A('s_nop 0')
    for i in range(12): A(f'v_mul_f32 v{O[0]+i}, v{T}, v{O[0]+i}')
    for j in range(6): A(f'v_cvt_pk_bf16_f32 v{P[0]+j}, v{O[0]+2*j}, v{O[0]+2*j+1}')
    A(f'buffer_store_dwordx4 {v(P[0],4)}, v{vL16}, s[{SW}:{SW+3}], s48 offen')
    A('s_mov_b64 exec, s[40:41]')
    A(f'buffer_store_dwordx2 {v(P[0]+4,2)}, v{vL16}, s[{SW}:{SW+3}], s49 offen')
    A('s_mov_b64 exec, -1')
    stamp(A, 2, 3, SW, T)
    A('att_done:')
    A('s_endpgm')
    A('att_slow:')
    m_, al = T+2, T+3
    A('v_lshlrev_b32 v5, 3, v2')
    A('v_lshlrev_b32 v6, 3, v3')
    A('v_mul_u32_u24 v7, 320, v4')
    A('v_lshl_add_u32 v7, v3, 4, v7')
    A(f'v_mov_b32 v{m_}, 0xff800000')
    for i in range(16): A(f'v_mov_b32 v{O[0]+i}, 0')
    A('s_mov_b32 s45, 0')
    A('att_slow_loop:')
    A(f'buffer_load_dwordx2 {v(K16[0],2)}, v5, s[{SW}:{SW+3}], s36 offen')
    A(f'buffer_load_dwordx2 {v(K16[0]+2,2)}, v5, s[{SW}:{SW+3}], s36 offen offset:512')
    A(f'buffer_load_dwordx2 {v(K8[0],2)}, v6, s[{SW}:{SW+3}], s36 offen offset:1024')
    A('s_mov_b64 exec, s[42:43]')
    A(f'buffer_load_dwordx4 {v(V[0],4)}, v7, s[{SW}:{SW+3}], s36 offen offset:1280')
    A(f'buffer_load_dwordx4 {v(V[0]+4,4)}, v7, s[{SW}:{SW+3}], s36 offen offset:1920')
    A('s_mov_b64 exec, -1')
    A('s_add_u32 s36, s36, 2560')
    A('s_waitcnt vmcnt(0)')
    A(f'v_mfma_f32_32x32x16_bf16 {v(S[0],16)}, {v(K16[0],4)}, {v(Q16[0],4)}, 0')
    A(f'v_mfma_f32_32x32x8bf16_1k {v(S[0],16)}, {v(K8[0],2)}, {v(Q8[0],2)}, {v(S[0],16)}')
    A('s_nop 15')
    rowmax(T, S[0], T+1)
    A(f'v_max_f32 v{T}, v{T}, v{m_}')
    A(f'v_sub_f32 v{al}, v{m_}, v{T}')
    A(f'v_exp_f32 v{al}, v{al}')
    A(f'v_mov_b32 v{m_}, v{T}')
    for i in range(16): A(f'v_sub_f32 v{S[0]+i}, v{S[0]+i}, v{m_}')
    for i in range(16): A(f'v_exp_f32 v{S[0]+i}, v{S[0]+i}')
    for i in range(16): A(f'v_mul_f32 v{O[0]+i}, v{al}, v{O[0]+i}')
    for j in range(8): A(f'v_cvt_pk_bf16_f32 v{P[0]+j}, v{S[0]+2*j}, v{S[0]+2*j+1}')
    A('s_nop 1')
    A(f'v_mfma_f32_32x32x16_bf16 {v(O[0],16)}, {v(V[0],4)}, {v(P[0],4)}, {v(O[0],16)}')
    A(f'v_mfma_f32_32x32x16_bf16 {v(O[0],16)}, {v(V[0]+4,4)}, {v(P[0]+4,4)}, {v(O[0],16)}')
    A('s_add_u32 s45, s45, 1')
    A('s_nop 15')
    A('s_cmp_lt_u32 s45, 64')
    A('s_cbranch_scc1 att_slow_loop')
    A('s_branch att_fin')
    return name, A.text(), kernel_desc(name, R.hi), (256, 512, XCH + 32768)

def gen_sk(kind):
    A = Asm()
    wo = kind == 'wo'
    name = kind + '_kernel'
    kid = 3 if wo else 5
    A(kernel_header(name))
    SW, SX = 16, 20
    NSW = 5 if wo else 12
    NTOT = 4 * NSW
    TS = 40960 if wo else 98304
    WBASE = WS_WO if wo else WS_WD
    ABASE = WS_O if wo else WS_ACT
    D = 5 if wo else 6
    XL = 61440
    R = Alloc(8, 256)
    vW, vW2 = R(), R()
    vA = [R(), R()]
    vR = R()
    RES = R(12, 4)
    buf = [R(36, 4) for _ in range(D)]
    A('s_cmp_ge_u32 s2, 256')
    A(f's_cbranch_scc1 {kind}_done')
    A('s_load_dwordx2 s[16:17], s[0:1], 72')
    A(f's_load_dwordx2 s[20:21], s[0:1], {0 if wo else 56}')
    A('v_lshrrev_b32 v1, 6, v0')
    A('v_and_b32 v2, 63, v0')
    A('v_readfirstlane_b32 s3, v1')
    A('s_and_b32 s8, s2, 7')
    A('s_lshr_b32 s9, s2, 3')
    A('s_lshr_b32 s10, s8, 1')
    A('s_lshl_b32 s30, s10, 3')
    A('s_lshr_b32 s10, s9, 2')
    A('s_add_u32 s30, s30, s10')
    A('s_and_b32 s10, s8, 1')
    A('s_lshl_b32 s31, s10, 2')
    A('s_and_b32 s10, s9, 3')
    A('s_add_u32 s31, s31, s10')
    A('v_and_b32 v3, 15, v2')
    A('v_lshrrev_b32 v4, 4, v2')
    A(f'v_lshlrev_b32 v{vW}, 4, v2')
    A(f'v_add_u32 v{vW2}, 4096, v{vW}')
    A('v_lshlrev_b32 v5, 9, v4')
    A(f'v_lshl_add_u32 v{vA[0]}, v3, 4, v5')
    A(f'v_add_u32 v{vA[1]}, {TS}, v{vA[0]}')
    A(f's_mul_i32 s32, s31, {NTOT}')
    A(f's_mul_i32 s34, s3, {NSW}')
    A('s_add_u32 s32, s32, s34')
    A('s_mul_i32 s32, s32, 5120')
    A(f's_add_u32 s32, s32, {WBASE}')
    A(f's_mul_i32 s33, s30, {2*TS}')
    A('s_lshl_b32 s34, s34, 11')
    A('s_add_u32 s33, s33, s34')
    A(f's_add_u32 s33, s33, {ABASE}')
    A('s_waitcnt lgkmcnt(0)')
    srd(A, SW, 16, WS_SIZE)
    srd(A, SX, 20, 2048*640*2)
    stamp(A, kid, 0, SW, RES)
    def loads(b):
        r = []
        for tk in range(4):
            r.append(f'buffer_load_dwordx4 {v(buf[b]+20+4*tk,4)}, v{vA[tk>>1]}, s[{SW}:{SW+3}], s33 offen offset:{256*(tk&1)}')
        for F in range(5):
            r.append(f'buffer_load_dwordx4 {v(buf[b]+4*F,4)}, v{vW if F<4 else vW2}, s[{SW}:{SW+3}], s32 offen offset:{1024*(F&3)}')
        r.append('s_add_u32 s33, s33, 2048')
        r.append('s_add_u32 s32, s32, 5120')
        return r
    for b in range(D):
        for x in loads(b): A(x)
    A('s_lshl_b32 s34, s30, 1')
    A('s_lshr_b32 s35, s3, 1')
    A('s_add_u32 s34, s34, s35')
    A('s_mul_i32 s36, s34, 40960')
    A('s_mul_i32 s37, s31, 5120')
    A('s_add_u32 s36, s36, s37')
    A('s_and_b32 s35, s3, 1')
    A('s_lshl_b32 s37, s35, 8')
    A('s_add_u32 s36, s36, s37')
    A(f's_add_u32 s36, s36, {WS_H}')
    A('v_lshrrev_b32 v5, 1, v4')
    A('v_lshlrev_b32 v5, 9, v5')
    A('v_lshl_add_u32 v5, v3, 4, v5')
    A('v_and_b32 v6, 1, v4')
    A('v_lshl_add_u32 v5, v6, 3, v5')
    A(f'v_add_u32 v{vR}, 4096, v5')
    A('s_lshl_b32 s38, s30, 6')
    A('s_lshl_b32 s39, s3, 4')
    A('s_add_u32 s38, s38, s39')
    A('s_mul_i32 s38, s38, 1280')
    A('s_mul_i32 s39, s31, 160')
    A('s_add_u32 s38, s38, s39')
    A('v_mul_u32_u24 v5, 1280, v3')
    A('v_lshl_add_u32 v6, v4, 4, v5')
    A('v_lshl_add_u32 v7, v4, 3, v5')
    nres = 3
    if wo:
        A(f'buffer_load_dwordx4 {v(RES,4)}, v6, s[{SX}:{SX+3}], s38 offen')
        A(f'buffer_load_dwordx4 {v(RES+4,4)}, v6, s[{SX}:{SX+3}], s38 offen offset:64')
        A(f'buffer_load_dwordx2 {v(RES+8,2)}, v7, s[{SX}:{SX+3}], s38 offen offset:128')
    else:
        A(f'buffer_load_dwordx4 {v(RES,4)}, v{vA[0]}, s[{SW}:{SW+3}], s36 offen')
        A(f'buffer_load_dwordx4 {v(RES+4,4)}, v{vA[0]}, s[{SW}:{SW+3}], s36 offen offset:2048')
        A(f'buffer_load_dwordx2 {v(RES+8,2)}, v{vR}, s[{SW}:{SW+3}], s36 offen')
    acc = lambda F, tk: (F*4 + tk) * 4
    for S_ in range(NSW):
        b = S_ % D
        issued = min(NSW, D + max(0, S_ - 1))
        out = 9 * (issued - S_ - 1) + (nres if S_ < D else 0)
        if PROF and S_ < D: out += 0
        A(f's_waitcnt vmcnt({out})')
        if S_ == 0: stamp(A, kid, 1, SW, 5+0) if False else None
        ms = []
        for F in range(5):
            for tk in range(4):
                c = '0' if S_ == 0 else a(acc(F,tk),4)
                ms.append(f'v_mfma_f32_16x16x32_bf16 {a(acc(F,tk),4)}, {v(buf[b]+4*F,4)}, {v(buf[b]+20+4*tk,4)}, {c}')
        fill = loads((S_ - 1) % D) if (S_ >= 1 and S_ + D - 1 < NSW) else []
        for x in interleave(ms, fill): A(x)
    A('s_nop 7')
    for k in range(1, 4):
        A(f's_add_u32 s34, s3, {k}')
        A('s_and_b32 s34, s34, 3')
        A('s_mul_i32 s34, s34, 15360')
        A(f's_add_u32 s34, s34, {(k-1)*5120}')
        A(f'v_add_u32 v{8+0}, s34, v{vW}') if False else None
        A(f's_mov_b32 s{40+k}, s34')
    for w in range(4):
        if w < 3:
            A(f's_cmp_lg_u32 s3, {w}')
            A(f's_cbranch_scc1 {kind}_w{w+1}')
        for k in range(1, 4):
            tk = (w + k) & 3
            A(f'v_add_u32 v5, s{40+k}, v{vW}')
            for F in range(5):
                A(f'ds_write_b128 v5, {a(acc(F,tk),4)} offset:{1024*F}')
        for F in range(5):
            for i in range(4):
                A(f'v_accvgpr_read_b32 v{buf[0]+4*F+i}, a{acc(F,w)+i}')
        if w < 3:
            A(f's_branch {kind}_wj')
            A(f'{kind}_w{w+1}:')
    A(f'{kind}_wj:')
    A('s_mul_i32 s34, s3, 15360')
    A(f'v_add_u32 v5, s34, v{vW}')
    A('s_waitcnt lgkmcnt(0)')
    A('s_barrier')
    Y = buf[0]
    for k in range(3):
        for F in range(5):
            A(f'ds_read_b128 {v(buf[1+k]+4*F,4)}, v5 offset:{5120*k+1024*F}')
    A('s_waitcnt vmcnt(0)')
    for j in range(10):
        t0 = buf[4]
        A(f'v_lshlrev_b32 v{t0}, 16, v{RES+j}')
        A(f'v_and_b32 v{t0+1}, 0xffff0000, v{RES+j}')
        A(f'v_add_f32 v{Y+2*j}, v{Y+2*j}, v{t0}')
        A(f'v_add_f32 v{Y+2*j+1}, v{Y+2*j+1}, v{t0+1}')
    for k in range(3):
        A(f's_waitcnt lgkmcnt({10-5*k})')
        for i in range(20):
            A(f'v_add_f32 v{Y+i}, v{Y+i}, v{buf[1+k]+i}')
    for j in range(10):
        A(f'v_cvt_pk_bf16_f32 v{RES+j}, v{Y+2*j}, v{Y+2*j+1}')
    if wo:
        A(f'buffer_store_dwordx4 {v(RES,4)}, v{vA[0]}, s[{SW}:{SW+3}], s36 offen')
        A(f'buffer_store_dwordx4 {v(RES+4,4)}, v{vA[0]}, s[{SW}:{SW+3}], s36 offen offset:2048')
        A(f'buffer_store_dwordx2 {v(RES+8,2)}, v{vR}, s[{SW}:{SW+3}], s36 offen')
        s1, s2, on = buf[1], buf[1]+1, buf[1]+2
        A(f'v_mov_b32 v{on}, {ONES:#x}')
        A(f'v_dot2_f32_bf16 v{s2}, v{RES}, v{RES}, 0')
        A(f'v_dot2_f32_bf16 v{s1}, v{RES}, v{on}, 0')
        for j in range(1, 10):
            A(f'v_dot2_f32_bf16 v{s2}, v{RES+j}, v{RES+j}, v{s2}')
            A(f'v_dot2_f32_bf16 v{s1}, v{RES+j}, v{on}, v{s1}')
        A('s_nop 2')
        A(f'v_permlane32_swap_b32 v{s1}, v{s2}')
        A(f'v_add_f32 v{s1}, v{s1}, v{s2}')
        A(f'v_mov_b32 v{s2}, v{s1}')
        A('s_nop 1')
        A(f'v_permlane16_swap_b32 v{s1}, v{s2}')
        A(f'v_add_f32 v{s1}, v{s1}, v{s2}')
        A('s_lshl_b32 s34, s30, 1')
        A('s_lshr_b32 s37, s3, 1')
        A('s_add_u32 s34, s34, s37')
        A('s_lshl_b32 s34, s34, 3')
        A('s_add_u32 s34, s34, s31')
        A('s_lshl_b32 s34, s34, 8')
        A('s_lshl_b32 s37, s35, 6')
        A('s_add_u32 s34, s34, s37')
        A(f's_add_u32 s34, s34, {WS_ST}')
        A('v_lshrrev_b32 v5, 5, v2')
        A('v_lshlrev_b32 v5, 7, v5')
        A('v_lshl_add_u32 v5, v3, 2, v5')
        A(f'buffer_store_dword v{s1}, v5, s[{SW}:{SW+3}], s34 offen')
    else:
        A(f'buffer_store_dwordx4 {v(RES,4)}, v6, s[{SX}:{SX+3}], s38 offen')
        A(f'buffer_store_dwordx4 {v(RES+4,4)}, v6, s[{SX}:{SX+3}], s38 offen offset:64')
        A(f'buffer_store_dwordx2 {v(RES+8,2)}, v7, s[{SX}:{SX+3}], s38 offen offset:128')
    stamp(A, kid, 3, SW, buf[2])
    A(f'{kind}_done:')
    A('s_endpgm')
    acc_off = (R.hi + 3) // 4 * 4
    return name, A.text(), kernel_desc(name, acc_off + 80, accum=acc_off), (256, 256, 61440)

def gen_gu():
    A = Asm()
    name = 'gu_kernel'
    A(kernel_header(name))
    SW = 16
    NS = 7; STG = 20480; NST = 20
    A('s_cmp_ge_u32 s2, 256')
    A('s_cbranch_scc1 gu_done')
    A('s_load_dwordx2 s[16:17], s[0:1], 72')
    A('v_lshrrev_b32 v1, 6, v0')
    A('v_and_b32 v2, 63, v0')
    A('v_readfirstlane_b32 s3, v1')
    A('s_and_b32 s8, s2, 7')
    A('s_lshr_b32 s9, s2, 3')
    A('s_lshr_b32 s10, s8, 1')
    A('s_lshl_b32 s30, s10, 2')
    A('s_lshr_b32 s10, s9, 3')
    A('s_add_u32 s30, s30, s10')
    A('s_and_b32 s10, s8, 1')
    A('s_lshl_b32 s31, s10, 3')
    A('s_and_b32 s10, s9, 7')
    A('s_add_u32 s31, s31, s10')
    A('v_lshlrev_b32 v8, 4, v2')
    A('s_waitcnt lgkmcnt(0)')
    srd(A, SW, 16, WS_SIZE)
    A('s_cmp_lt_u32 s3, 4')
    A('s_cbranch_scc1 gu_compute')
    A('s_sub_u32 s32, s3, 4')
    A('s_lshl_b32 s33, s30, 2')
    A('s_add_u32 s33, s33, s32')
    A('s_mul_i32 s33, s33, 40960')
    A(f's_add_u32 s33, s33, {WS_H}')
    A('s_mul_i32 s34, s31, 245760')
    A('s_mul_i32 s35, s32, 3072')
    A('s_add_u32 s34, s34, s35')
    A(f's_add_u32 s34, s34, {WS_WGU}')
    A('s_lshl_b32 s36, s32, 11')
    A('s_add_u32 s36, s36, 12288')
    A('s_mov_b32 s37, 0')
    def issue():
        A('s_add_u32 s38, s37, s36')
        A('s_mov_b32 m0, s38')
        A('s_add_u32 s38, s37, s35')
        for j in range(2):
            A(f'buffer_load_dwordx4 v8, s[{SW}:{SW+3}], s33 offen offset:{1024*j} lds')
        A('s_mov_b32 m0, s38')
        A('s_add_u32 s33, s33, 2048')
        for j in range(3):
            A(f'buffer_load_dwordx4 v8, s[{SW}:{SW+3}], s34 offen offset:{1024*j} lds')
        A('s_add_u32 s34, s34, 12288')
        A(f's_add_u32 s37, s37, {STG}')
        A(f's_cmp_eq_u32 s37, {NS*STG}')
        A('s_cselect_b32 s37, 0, s37')
    A(f's_mov_b32 s39, {NS}')
    A('gu_lpro:')
    issue()
    A('s_sub_u32 s39, s39, 1')
    A('s_cmp_lg_u32 s39, 0')
    A('s_cbranch_scc1 gu_lpro')
    A(f's_waitcnt vmcnt({5*(NS-1)})')
    A('s_barrier')
    A(f's_mov_b32 s39, {NST-NS}')
    A('gu_lmain:')
    A(f's_waitcnt vmcnt({5*(NS-2)})')
    A('s_barrier')
    issue()
    A('s_sub_u32 s39, s39, 1')
    A('s_cmp_lg_u32 s39, 0')
    A('s_cbranch_scc1 gu_lmain')
    for st in range(NST-NS+1, NST):
        A(f's_waitcnt vmcnt({5*(NST-st-1)})')
        A('s_barrier')
    A('s_endpgm')
    A('gu_compute:')
    R = Alloc(9, 256)
    aA, aB, bA, bB = R(), R(), R(), R()
    X = [[R(4, 4) for _ in range(2)] for _ in range(2)]
    W = [[R(4, 4) for _ in range(3)] for _ in range(2)]
    acc = [[R(16, 4) for _ in range(3)] for _ in range(2)]
    EX = [R(2) for _ in range(2)]; EW = [R(2) for _ in range(3)]
    mean = [R(), R()]; rstd = [R(2), R(2)]; nr = [R(2), R(2)]
    T = R(32, 4)
    stamp(A, 4, 0, SW, T)
    A('s_and_b32 s32, s3, 1')
    A('s_lshr_b32 s33, s3, 1')
    A('s_lshl_b32 s34, s32, 12')
    A('s_add_u32 s34, s34, 12288')
    A(f'v_add_u32 v{bA}, s34, v8')
    A('s_mul_i32 s34, s33, 3072')
    A(f'v_add_u32 v{bB}, s34, v8')
    A(f'v_mov_b32 v{aA}, v{bA}'); A(f'v_mov_b32 v{aB}, v{bB}')
    A('s_lshl_b32 s35, s30, 2')
    A('s_lshl_b32 s36, s32, 1')
    A('s_add_u32 s35, s35, s36')
    A('s_lshl_b32 s36, s35, 11')
    A(f's_add_u32 s36, s36, {WS_ST}')
    A('v_lshlrev_b32 v5, 2, v2')
    for tt in range(2):
        for f in range(8):
            A(f'buffer_load_dword v{T+8*tt+f}, v5, s[{SW}:{SW+3}], s36 offen offset:{2048*tt+256*f}')
    A('s_mul_i32 s36, s31, 6')
    A('s_mul_i32 s37, s33, 3')
    A('s_add_u32 s36, s36, s37')
    A('s_lshl_b32 s37, s36, 7')
    A(f's_add_u32 s37, s37, {WS_CS}')
    A('v_and_b32 v3, 31, v2')
    A('v_lshlrev_b32 v6, 2, v3')
    for kq in range(5):
        for m in range(3):
            A(f'buffer_load_dword v{T+16+5*m+kq}, v6, s[{SW}:{SW+3}], s37 offen offset:{128*m}')
        A('s_add_u32 s37, s37, 12288')
    for i in range(96): A(f'v_mov_b32 v{acc[0][0]+i}, 0')
    A('s_mul_i32 s38, s35, 98304')
    A('s_lshl_b32 s39, s36, 10')
    A('s_add_u32 s38, s38, s39')
    A(f's_add_u32 s50, s38, {WS_ACT}')
    A('s_add_u32 s51, s50, 98304')
    A('s_mov_b32 s40, -1'); A('s_mov_b32 s41, 0')
    A('s_waitcnt vmcnt(15)')
    for tt in range(2):
        b = T + 8*tt
        for f in range(1, 8): A(f'v_add_f32 v{b}, v{b}, v{b+f}')
        A(f'v_mov_b32 v{b+1}, v{b}')
        A('s_nop 1')
        A(f'v_permlane32_swap_b32 v{b}, v{b+1}')
        ln_stats(A, b, b+1, mean[tt], rstd[tt], b+2)
        ext_tok(A, mean[tt], EX[tt], b+2, b+3, 40)
        A(f'v_mul_f32 v{nr[tt]}, {f2u(-math.log2(math.e)):#x}, v{rstd[tt]}')
        A(f'v_mul_f32 v{rstd[tt]}, v{rstd[tt]}, v{rstd[tt]}')
        A(f'v_mov_b32 v{nr[tt]+1}, v{nr[tt]}')
        A(f'v_mov_b32 v{rstd[tt]+1}, v{rstd[tt]}')
    A('s_waitcnt vmcnt(0)')
    for m in range(3):
        b = T + 16 + 5*m
        for kq in range(1, 5): A(f'v_add_f32 v{b}, v{b}, v{b+kq}')
        ext_feat(A, b, EW[m], b+1, b+2)
    def reads(buf, s_):
        r = []
        for tt in range(2): r.append(f'ds_read_b128 {v(X[buf][tt],4)}, v{aA} offset:{2048*tt + 1024*s_}')
        for m in range(3): r.append(f'ds_read_b128 {v(W[buf][m],4)}, v{aB} offset:{6144*s_ + 1024*m}')
        return r
    def mfmas(buf):
        return [f'v_mfma_f32_32x32x16_bf16 {v(acc[tt][m],16)}, {v(W[buf][m],4)}, {v(X[buf][tt],4)}, {v(acc[tt][m],16)}' for m in range(3) for tt in range(2)]
    A('s_mov_b32 s37, 0')
    A(f's_mov_b32 s48, {NST}')
    A('s_barrier')
    stamp(A, 4, 1, SW, T)
    for x in reads(0, 0): A(x)
    A('gu_loop:')
    A('s_waitcnt lgkmcnt(0)')
    for x in interleave(mfmas(0), reads(1, 1) + [f's_add_u32 s37, s37, {STG}', f's_cmp_eq_u32 s37, {NS*STG}', 's_cselect_b32 s37, 0, s37']): A(x)
    A('s_waitcnt lgkmcnt(0)')
    A('s_barrier')
    for x in interleave(mfmas(1), [f'v_add_u32 v{aA}, s37, v{bA}', f'v_add_u32 v{aB}, s37, v{bB}'] + reads(0, 0) + ['s_sub_u32 s48, s48, 1', 's_cmp_lg_u32 s48, 0']): A(x)
    A('s_cbranch_scc1 gu_loop')
    stamp(A, 4, 2, SW, T)
    for m in range(3):
        for tt in range(2):
            A(f'v_mfma_f32_32x32x8bf16_1k {v(acc[tt][m],16)}, {v(EW[m],2)}, {v(EX[tt],2)}, {v(acc[tt][m],16)}')
    A('s_nop 7')
    k = 0
    for m in range(3):
        for tt in range(2):
            g = acc[tt][m]; u = g + 8
            z = T + 8*(k & 1); d = T + 16 + 4*(k & 3); k += 1
            for i in range(0, 8, 2): A(f'v_pk_mul_f32 {v(z+i,2)}, {v(g+i,2)}, {v(nr[tt],2)}')
            for i in range(0, 8, 2): A(f'v_pk_mul_f32 {v(g+i,2)}, {v(g+i,2)}, {v(u+i,2)}')
            for i in range(8): A(f'v_exp_f32 v{z+i}, v{z+i}')
            for i in range(0, 8, 2): A(f'v_pk_mul_f32 {v(g+i,2)}, {v(g+i,2)}, {v(rstd[tt],2)}')
            for i in range(0, 8, 2): A(f'v_pk_add_f32 {v(z+i,2)}, {v(z+i,2)}, 1.0 op_sel_hi:[1,0]')
            for i in range(8): A(f'v_rcp_f32 v{z+i}, v{z+i}')
            A('s_nop 0')
            for i in range(0, 8, 2): A(f'v_pk_mul_f32 {v(g+i,2)}, {v(g+i,2)}, {v(z+i,2)}')
            for j in range(4): A(f'v_cvt_pk_bf16_f32 v{d+j}, v{g+2*j}, v{g+2*j+1}')
            A(f'buffer_store_dwordx4 {v(d,4)}, v8, s[{SW}:{SW+3}], s{50+tt} offen offset:{1024*m}')
    stamp(A, 4, 3, SW, T)
    A('gu_done:')
    A('s_endpgm')
    return name, A.text(), kernel_desc(name, R.hi), (256, 512, NS*STG)

def main():
    ks = [gen_prep(), gen_qkv(), gen_att(), gen_sk('wo'), gen_gu(), gen_sk('down')]
    if 'attonly' in OPT: ks = ks[1:3]
    extra = 0
    for x in sys.argv:
        if x.startswith('--extra='): extra = int(x[8:])
    hdr = open('cdna_kernels/' + NAME + '.s.ref').read().split('; Override launch')[0]
    out = hdr
    for n, _, _, (g, b, l) in ks:
        out += f'; @launch kernel={n} grid=({g},1,1) block=({b},1,1) lds={l}\n'
    for i in range(extra):
        out += '; @launch kernel=nop_kernel grid=(256,1,1) block=(256,1,1) lds=0\n'
    out += '.amdgcn_target "amdgcn-amd-amdhsa--gfx950"\n'
    for n, t, d, _ in ks: out += t
    if extra: out += kernel_header('nop_kernel') + '    s_endpgm\n'
    for n, t, d, _ in ks: out += d
    if extra: out += kernel_desc('nop_kernel', 8)
    dst = [x for x in sys.argv[1:] if not x.startswith('--')]
    open(dst[0] if dst else 'out1.s', 'w').write(out)


def check(W, inp, o, exp):
    import numpy as np, torch
    def bf(off, n): return torch.from_numpy(W[off:off+2*n].view(np.int16).copy()).view(torch.bfloat16).float()
    def f32(off, n): return torch.from_numpy(W[off:off+4*n].view(np.float32).copy())
    def rel(a, b): return 'rel %.5f maxabs %.4g nan %d' % (((a-b).norm()/b.norm()).item(), (a-b).abs().max().item(), torch.isnan(a).sum().item())
    x = inp['A_x'][0].float(); wqkv = inp['A_wqkv'].float(); wo = inp['A_wo'].float()
    wg = inp['B_w_gate'].float(); wu = inp['B_w_up'].float(); wd = inp['B_w_down'].float()
    def ln(z): return (z - z.mean(-1, keepdim=True)) / torch.sqrt(z.var(-1, keepdim=True, unbiased=False) + 1e-5)
    perm16 = torch.tensor([[8*(j//4) + 4*h + j % 4 for j in range(8)] for h in range(2)])
    nat16 = torch.arange(16).reshape(2, 8)
    def img(off, steps, order):
        a = bf(off, 64*steps*512).reshape(64, steps, 2, 32, 8)
        r = torch.zeros(64, 32, steps, 16)
        for h in range(2):
            r[:, :, :, order[h]] = a[:, :, h].permute(0, 2, 1, 3)
        return r.reshape(2048, steps*16)
    g = bf(WS_WGU, 16*40*6*512).reshape(16, 40, 6, 2, 32, 8)
    g = g.permute(1, 3, 5, 0, 2, 4).reshape(640, 96, 32)
    print('  Wgu gate', rel(g[:, :, :16].reshape(640, 1536), wg), '| up', rel(g[:, :, 16:].reshape(640, 1536), wu))
    cs = f32(WS_CS, 5*3072).reshape(5, 96, 32).sum(0)
    print('  colsum', rel(cs[:, :16].reshape(-1), wg.sum(0)), rel(cs[:, 16:].reshape(-1), wu.sum(0)))
    feat = torch.zeros(5, 16, dtype=torch.long)
    for F in range(5):
        for n in range(16):
            gg, i = n // 4, n % 4
            feat[F, n] = 32*(F//2) + 8*gg + 4*(F % 2) + i if F < 4 else 64 + n
    def skw(off, NS, rowf, K):
        a = bf(off, 8*NS*5*512).reshape(8, NS, 5, 4, 16, 8)
        r = torch.zeros(K, 640)
        for S in range(NS):
            for gq in range(4):
                for j in range(8):
                    row = rowf(S, gq, j)
                    for F in range(5):
                        for ft in range(8):
                            r[row, ft*80 + feat[F]] = a[ft, S, F, gq, :, j]
        return r
    print('  Wd', rel(skw(WS_WD, 48, lambda S, g_, j: 32*S + 16*(g_//2) + 8*(j//4) + 4*(g_ % 2) + j % 4, 1536), wd))
    def worow(S, g_, j):
        if S < 16: return 20*(2*S + g_//2) + 8*(j//4) + 4*(g_ % 2) + j % 4
        return 20*(8*(S-16) + 4*(g_//2) + 2*(g_ % 2) + j//4) + 16 + j % 4
    print('  Wo', rel(skw(WS_WO, 20, worow, 640), wo))
    qkv = ln(x) @ wqkv
    q = bf(WS_Q, 32*64*640).reshape(32, 64, 5, 32, 4).permute(1, 3, 0, 2, 4).reshape(2048, 640)
    print('  Q', rel(q, qkv[:, :640]*QSCALE))
    kv = bf(WS_KV, 32*64*1280).reshape(32, 64, 2, 640)
    kk = kv[:, :, 0].reshape(32, 64, 5, 32, 4).permute(1, 3, 0, 2, 4).reshape(2048, 640)
    print('  K', rel(kk, qkv[:, 640:1280]))
    vv = kv[:, :, 1].reshape(32, 64, 2, 2, 20, 8)
    vr = torch.zeros(64, 2, 16, 32, 20)
    for h in range(2):
        vr[:, :, perm16[h]] = vv[:, :, :, h].permute(1, 2, 4, 0, 3)
    vr = vr.reshape(2048, 640)
    print('  V', rel(vr, qkv[:, 1280:]))
    qh = q.reshape(2048, 32, 20).permute(1, 0, 2); kh = kk.reshape(2048, 32, 20).permute(1, 0, 2); vh = vr.reshape(2048, 32, 20).permute(1, 0, 2)
    oref = (torch.softmax(qh @ kh.transpose(1, 2) * math.log(2), -1) @ vh).permute(1, 0, 2)
    om = img(WS_O, 40, perm16)
    oo = torch.zeros(2048, 32, 20)
    oo[:, :, :16] = om[:, :512].reshape(2048, 32, 16)
    a = bf(WS_O, 64*40*512).reshape(64, 40, 2, 32, 2, 4)[:, 32:]
    oo[:, :, 16:] = a.permute(0, 3, 1, 2, 4, 5).reshape(2048, 32, 4)
    print('  O', rel(oo, oref))
    href = x + oo.reshape(2048, 640) @ wo
    hh = img(WS_H, 40, nat16)
    print('  H', rel(hh, href))
    st = f32(WS_ST, 64*8*64).reshape(64, 8, 2, 32).sum(1)
    print('  ST', rel(st[:, 0].reshape(-1), hh.sum(-1)), rel(st[:, 1].reshape(-1), (hh*hh).sum(-1)))
    l2 = ln(hh)
    aref = torch.nn.functional.silu(l2 @ wg) * (l2 @ wu)
    act = img(WS_ACT, 96, perm16)
    print('  ACT', rel(act, aref))
    print('  OUT(self)', rel(o, hh + act @ wd))
    qh = (qkv[:, :640]*20**-0.5).reshape(2048, 32, 20).permute(1, 0, 2); kh = qkv[:, 640:1280].reshape(2048, 32, 20).permute(1, 0, 2); vh = qkv[:, 1280:].reshape(2048, 32, 20).permute(1, 0, 2)
    h32 = x + (torch.softmax(qh @ kh.transpose(1, 2), -1) @ vh).permute(1, 0, 2).reshape(2048, 640) @ wo
    l32 = ln(h32); o32 = h32 + (torch.nn.functional.silu(l32 @ wg) * (l32 @ wu)) @ wd
    print('  ours vs fp32', rel(o, o32), '| ref vs fp32', rel(exp, o32))

if __name__ == '__main__':
    main()
```

```python
import sys, math, struct
from dsl import *
import gen1
from gen1 import f2u, QSCALE, ONES, div_magic, ln_stats, ext_tok, ext_feat

NAME = 'sequential_preLN__softmax_full_mha__swiglu_ffn__prompt'
OPT = dict((x[2:].split('=') + ['1'])[:2] for x in sys.argv if x.startswith('--'))
PROF = 'prof' in OPT

WS_Q, WS_KV, WS_O, WS_H, WS_ACT = gen1.WS_Q, gen1.WS_KV, gen1.WS_O, gen1.WS_H, gen1.WS_ACT
WS_WO, WS_WGU, WS_WD, WS_CS, WS_ST = gen1.WS_WO, gen1.WS_WGU, gen1.WS_WD, gen1.WS_CS, gen1.WS_ST
WS_RS  = 0x1920000
WS_CQ  = 0x1950000
WS_CNT = 0x1980000
WS_PROF = gen1.WS_PROF
WS_SIZE = gen1.WS_SIZE
check = gen1.check
L_H1, L_P, L_SROW, L_SCOL, L_H2, L_H3, L_H4 = 0, 64, 72, 88, 104, 112, 128

SW, SA, SB, SC = 4, 8, 12, 16
M32, MD20 = 90, 92
VL, VL16 = 1, 2
HRES = 8
V0 = 18
SC1 = 'sc1'
LDS_TOTAL = 163840
SPINMAX = 1 << 20

def sr(n): return f's[{n}:{n+3}]'

class VM:
    def __init__(self, A): self.A = A; self.q = []
    def __call__(self, text, tag=None):
        self.A(text); self.q.append(tag)
    def skip(self, tag=None): self.q.append(tag)
    def count_after(self, tag):
        idx = max(i for i, t in enumerate(self.q) if t == tag)
        return len(self.q) - 1 - idx
    def wait(self, tag, extra='', slack=0):
        if tag not in self.q:
            if extra: self.A(f's_waitcnt {extra}')
            return
        n = self.count_after(tag) - slack
        assert 0 <= n <= 63, n
        self.A(f's_waitcnt vmcnt({n}) {extra}')
    def wait_all(self, extra=''):
        self.A(f's_waitcnt vmcnt(0) {extra}'); self.q = []

def stamp(A, kid, pt, vt, wave=0, vm=None):
    if not PROF: return
    L = A.label('st')
    A(f's_cmp_lg_u32 s3, {wave}')
    A(f's_cbranch_scc1 {L}')
    A('s_memrealtime s[96:97]')
    A('s_memtime s[94:95]')
    A('s_lshl_b32 s98, s2, 2')
    A(f's_add_u32 s98, s98, {WS_PROF + (kid*8+pt)*1024}')
    A('s_add_u32 s99, s98, 65536')
    A('s_waitcnt lgkmcnt(0)')
    A(f'v_mov_b32 v{vt}, s96')
    A(f'v_mov_b32 v{vt+1}, 0')
    A(f'buffer_store_dword v{vt}, v{vt+1}, {sr(SW)}, s98 offen')
    A(f'v_mov_b32 v{vt}, s94')
    A(f'buffer_store_dword v{vt}, v{vt+1}, {sr(SW)}, s99 offen')
    A(f'{L}:')

def load_ptr_srd(A, dst, off, nbytes):
    A(f's_load_dwordx2 s[{dst}:{dst+1}], s[0:1], {off}')
    A('s_waitcnt lgkmcnt(0)')
    srd(A, dst, dst, nbytes)

def spin(A, vaddr, vdata, target, nl_mask, first_issued=False, soff='0'):
    L, Lq = A.label('spin'), A.label('spun')
    A(f's_mov_b64 exec, {nl_mask}')
    if first_issued:
        A(f'v_cmp_ne_u32 vcc, {target}, v{vdata}')
        A('s_nop 4')
        A(f's_cbranch_vccz {Lq}')
    A(f's_mov_b32 s88, {SPINMAX}')
    A(f'{L}:')
    A(f'buffer_load_dword v{vdata}, v{vaddr}, {sr(SW)}, {soff} offen sc1')
    A('s_waitcnt vmcnt(0)')
    A(f'v_cmp_ne_u32 vcc, {target}, v{vdata}')
    A('s_sub_u32 s88, s88, 1')
    A(f's_cbranch_scc1 {Lq}')
    A('s_nop 2')
    A(f's_cbranch_vccnz {L}')
    A(f'{Lq}:')
    A('s_mov_b64 exec, -1')

def signal_wait(A, wave, sig_line_s, nsig_stride, nsig, poll_line_s, npoll, target, t0, do_signal=True):
    L = A.label('sw')
    A(f's_cmp_lg_u32 s3, {wave}')
    A(f's_cbranch_scc1 {L}')
    if do_signal:
        A(f's_lshl_b32 s20, s{sig_line_s}, 7')
        A(f's_add_u32 s20, s20, {WS_CNT}')
        A(f'v_mul_u32_u24 v{t0}, {128*nsig_stride}, v{VL}')
        A(f'v_mov_b32 v{t0+1}, 1')
        A(f's_mov_b64 exec, {(1 << nsig) - 1:#x}')
        A(f'buffer_atomic_add v{t0+1}, v{t0}, {sr(SW)}, s20 offen sc1')
        A('s_mov_b64 exec, -1')
    A(f's_lshl_b32 s20, s{poll_line_s}, 7')
    A(f's_add_u32 s20, s20, {WS_CNT}')
    A(f'v_lshlrev_b32 v{t0}, 7, v{VL}')
    spin(A, t0, t0+1, target, f'{(1 << npoll) - 1:#x}', soff='s20')
    A(f'{L}:')
    A('s_barrier')

def ph_start(A):
    A('s_cmp_ge_u32 s2, 256')
    A('s_cbranch_scc1 L_done')
    A(f's_load_dwordx2 s[{SW}:{SW+1}], s[0:1], 72')
    A(f's_load_dwordx2 s[{SA}:{SA+1}], s[0:1], 0')
    A(f's_load_dwordx2 s[{SB}:{SB+1}], s[0:1], 8')
    A(f's_load_dwordx2 s[{SC}:{SC+1}], s[0:1], 64')
    A('v_lshrrev_b32 v3, 6, v0')
    A(f'v_and_b32 v{VL}, 63, v0')
    A('v_readfirstlane_b32 s3, v3')
    A(f'v_lshlrev_b32 v{VL16}, 4, v{VL}')
    A(f's_mov_b32 s{M32}, -1'); A(f's_mov_b32 s{M32+1}, 0')
    A(f's_mov_b32 s{MD20}, 0xfffff'); A(f's_mov_b32 s{MD20+1}, 0xfffff')
    A('s_waitcnt lgkmcnt(0)')
    srd(A, SW, SW, WS_SIZE)
    srd(A, SA, SA, 2048*640*2)
    srd(A, SB, SB, 640*1920*2)
    srd(A, SC, SC, 256)
    stamp(A, 1, 0, 4)
    A('s_cmp_lt_u32 s2, 240')
    A('s_cbranch_scc1 L_qkv')
    A('s_cmp_lg_u32 s3, 0')
    A('s_cbranch_scc1 L_spare_w')
    A('s_cmp_lg_u32 s2, 255')
    A('s_cbranch_scc1 L_spare_p')
    A(f'v_lshlrev_b32 v3, 7, v{VL}')
    A('v_mov_b32 v4, 0')
    for i in range(3):
        A(f's_mov_b32 s20, {WS_CNT + 8192*i}')
        A(f'buffer_store_dword v4, v3, {sr(SW)}, s20 offen sc1')
    A('s_waitcnt vmcnt(0)')
    A('v_mov_b32 v5, 1')
    A('s_mov_b64 exec, 1')
    A(f'buffer_store_dword v5, v4, {sr(SC)}, 0 offen sc1')
    A('s_mov_b64 exec, -1')
    A('L_spare_p:')
    wait_ready(A, 4, 5)
    A('L_spare_w:')
    if 'nowarm' not in OPT:
        A('s_getpc_b64 s[20:21]')
        A('L_pc:')
        A(f's_sub_u32 s20, s20, L_pc - {NAME}_kernel')
        A('s_subb_u32 s21, s21, 0')
        A('v_lshlrev_b32 v3, 7, v0')
        A(f'v_cmp_gt_u32 vcc, L_end - {NAME}_kernel, v3')
        A('s_and_saveexec_b64 s[22:23], vcc')
        A('s_cbranch_execz L_nowarm')
        A('global_load_dword v4, v3, s[20:21]')
        A('s_waitcnt vmcnt(0)')
        A('L_nowarm:')
        A('s_mov_b64 exec, -1')
    A('s_branch L_h1_spare')

def wait_ready(A, t0, t1, first_issued=False):
    L, Lq = A.label('rdy'), A.label('rdyq')
    A('s_mov_b64 exec, 1')
    if first_issued:
        A(f'v_cmp_ne_u32 vcc, 1, v{t1}')
        A('s_nop 4')
        A(f's_cbranch_vccz {Lq}')
    A(f'v_mov_b32 v{t0}, 0')
    A(f's_mov_b32 s88, {SPINMAX}')
    A(f'{L}:')
    A(f'buffer_load_dword v{t1}, v{t0}, {sr(SC)}, 0 offen sc1')
    A('s_waitcnt vmcnt(0)')
    A(f'v_cmp_ne_u32 vcc, 1, v{t1}')
    A('s_sub_u32 s88, s88, 1')
    A(f's_cbranch_scc1 {Lq}')
    A('s_nop 2')
    A(f's_cbranch_vccnz {L}')
    A(f'{Lq}:')
    A('s_mov_b64 exec, -1')

def ph_qkv(A):
    SX, SWT = SA, SB
    NS = 4; STG = 32768; NST = 10
    LST = NS * STG
    KAH = int(OPT.get('qk', 2))
    A('L_qkv:')
    A('s_and_b32 s20, s2, 7')
    A('s_lshr_b32 s21, s2, 3')
    A('s_lshr_b32 s22, s20, 1')
    A('s_and_b32 s23, s20, 1')
    A('s_lshl_b32 s30, s22, 2')
    A('s_lshr_b32 s31, s21, 2')
    A('s_lshl_b32 s24, s23, 3')
    A('s_add_u32 s31, s31, s24')
    A('s_and_b32 s24, s21, 3')
    A('s_lshl_b32 s25, s23, 1')
    A('s_add_u32 s25, s25, s24')
    A('s_cmp_ge_u32 s21, 28')
    A('s_cselect_b32 s31, 7, s31')
    A('s_cselect_b32 s24, s25, s24')
    A('s_add_u32 s30, s30, s24')
    A('s_add_u32 s29, s30, s31')
    for _ in range(2):
        A('s_sub_u32 s24, s29, 10')
        A('s_cmp_ge_u32 s29, 10')
        A('s_cselect_b32 s29, s24, s29')
    A('s_cmp_lt_u32 s3, 4')
    A('s_cbranch_scc1 qkv_compute')
    vm = VM(A)
    vA_, vB_ = 20, 24
    A('s_sub_u32 s32, s3, 4')
    A('s_lshl_b32 s33, s30, 7')
    A('s_lshl_b32 s34, s32, 5')
    A('s_add_u32 s33, s33, s34')
    A(f'v_lshrrev_b32 v3, 3, v{VL}')
    A(f'v_lshrrev_b32 v4, 4, v{VL}')
    A(f'v_and_b32 v5, 7, v{VL}')
    for j in range(4):
        A(f'v_add_u32 v6, {8*j}, v3')
        A('v_add_u32 v6, s33, v6')
        A('v_mul_u32_u24 v6, 1280, v6')
        A(f'v_add_u32 v7, {(4*j)&7}, v4')
        A('v_xor_b32 v7, v5, v7')
        A(f'v_lshl_add_u32 v{vA_+j}, v7, 4, v6')
        if j: A(f'v_subrev_u32 v{vA_+j}, {1024*j}, v{vA_+j}')
    A('s_lshl_b32 s34, s32, 4')
    A('s_lshl_b32 s35, s31, 8')
    A(f'v_and_b32 v5, 15, v{VL}')
    A('v_lshlrev_b32 v7, 2, v4')
    A('v_xor_b32 v5, v5, v7')
    A('v_lshlrev_b32 v5, 4, v5')
    A('v_add_u32 v5, s35, v5')
    for j in range(4):
        A(f'v_add_u32 v6, {4*j}, v4')
        A('v_add_u32 v6, s34, v6')
        A('v_mul_u32_u24 v6, 3840, v6')
        A(f'v_add_u32 v{vB_+j}, v5, v6')
        if j: A(f'v_subrev_u32 v{vB_+j}, {1024*j}, v{vB_+j}')
    A('s_lshl_b32 s36, s32, 12')
    A('s_lshl_b32 s37, s29, 7')
    A(f's_mul_i32 s38, s29, {64*3840}')
    def issue(st):
        slot = st % NS
        A(f's_add_u32 s39, s36, {slot*STG}')
        A('s_mov_b32 m0, s39')
        A(f's_add_u32 s39, s36, {slot*STG+16384}')
        for j in range(4):
            vm(f'buffer_load_dwordx4 v{vA_+j}, {sr(SX)}, s37 offen offset:{1024*j} lds', f'st{st}')
        A('s_mov_b32 m0, s39')
        A('s_add_u32 s37, s37, 128')
        for j in range(4):
            vm(f'buffer_load_dwordx4 v{vB_+j}, {sr(SWT)}, s38 offen offset:{1024*j} lds', f'st{st}')
        A(f's_add_u32 s38, s38, {64*3840}')
        A('s_cmp_eq_u32 s37, 1280')
        A('s_cselect_b32 s37, 0, s37')
        A('s_cselect_b32 s38, 0, s38')
    P0 = 32
    vPoll, vPa, vOne = 28, 29, 30
    A(f's_add_u32 s40, s30, {L_SROW}')
    A(f's_add_u32 s41, s31, {L_SCOL}')
    A('s_sub_u32 s41, s41, s40')
    A(f'v_mul_lo_u32 v{vPa}, v{VL}, s41')
    A(f'v_add_u32 v{vPa}, s40, v{vPa}')
    A(f'v_lshlrev_b32 v{vPa}, 7, v{vPa}')
    A(f'v_add_u32 v{vPa}, {WS_CNT}, v{vPa}')
    A(f'v_mov_b32 v{vOne}, 1')
    A('s_cmp_lt_u32 s31, 10')
    A('s_cselect_b32 s42, 1, 0')
    A('s_cmp_lt_u32 s30, 10')
    A('s_cselect_b32 s43, 2, 0')
    A('s_or_b32 s42, s42, s43')
    A('s_cmp_eq_u32 s32, 0')
    A('s_cselect_b32 s42, s42, 0')
    A('s_mov_b32 s43, 0')
    nxt = 0
    for _ in range(KAH): issue(nxt); nxt += 1
    for st in range(NST):
        vm.wait(f'st{st}')
        if st == 7:
            spin(A, vPa, vPoll, 10, '3', first_issued=True)
            A('s_mul_i32 s44, s30, 10240')
            A('s_lshl_b32 s45, s32, 8')
            A('s_add_u32 s44, s44, s45')
            A(f's_add_u32 s44, s44, {WS_RS}')
            A('s_mul_i32 s45, s31, 5120')
            A('s_lshl_b32 s46, s32, 7')
            A('s_add_u32 s45, s45, s46')
            A(f's_add_u32 s45, s45, {WS_CQ}')
            A(f'v_lshlrev_b32 v3, 2, v{VL}')
            A(f'v_and_b32 v4, 31, v{VL}')
            A('v_lshlrev_b32 v4, 2, v4')
            for c in range(10):
                if c in (4, 8): A('s_add_u32 s44, s44, 4096')
                vm(f'buffer_load_dword v{P0+c}, v3, {sr(SW)}, s44 offen offset:{1024*(c&3)} sc1', 'part')
            for c in range(10):
                if c == 8: A('s_add_u32 s45, s45, 4096')
                vm(f'buffer_load_dword v{P0+10+c}, v4, {sr(SW)}, s45 offen offset:{512*(c&7)} sc1', 'part')
        A('s_barrier')
        lim = min(NST, st + NS) if st >= 1 else min(NST, NS)
        want = min(lim, st + 1 + KAH)
        if st == 3:
            L = A.label('nosig')
            A('s_cmp_eq_u32 s42, 0')
            A(f's_cbranch_scc1 {L}')
            A('s_mov_b64 exec, s[42:43]')
            A(f'buffer_atomic_add v{vOne}, v{vPa}, {sr(SW)}, 0 offen sc1')
            A('s_mov_b64 exec, -1')
            A(f'{L}:')
        while nxt < want:
            if nxt == 8:
                A('s_mov_b64 exec, 3')
                vm(f'buffer_load_dword v{vPoll}, v{vPa}, {sr(SW)}, 0 offen sc1', 'st7')
                A('s_mov_b64 exec, -1')
            issue(nxt); nxt += 1
    assert nxt == NST
    vm.wait_all()
    for c in range(1, 10):
        A(f'v_add_f32 v{P0}, v{P0}, v{P0+c}')
        A(f'v_add_f32 v{P0+10}, v{P0+10}, v{P0+10+c}')
    A(f'v_mov_b32 v{P0+1}, v{P0}')
    A('s_nop 1')
    A(f'v_permlane32_swap_b32 v{P0}, v{P0+1}')
    ln_stats(A, P0, P0+1, P0+2, P0+3, P0+4)
    A('s_lshl_b32 s44, s32, 8')
    A(f's_add_u32 s44, s44, {LST}')
    A('v_lshl_add_u32 v5, v4, 1, s44')
    A(f'ds_write_b64 v5, v[{P0+2}:{P0+3}]')
    A('s_lshl_b32 s44, s32, 7')
    A(f's_add_u32 s44, s44, {LST+1024}')
    A('v_add_u32 v5, s44, v4')
    A(f'ds_write_b32 v5, v{P0+10}')
    A('s_waitcnt lgkmcnt(0)')
    A('s_barrier')
    A('s_branch L_h1')
    A('qkv_compute:')
    R = Alloc(V0, 256)
    vA = [[R() for _ in range(4)] for _ in range(2)]
    vB = [R() for _ in range(2)]
    vSt = [R() for _ in range(8)]
    sx = R(2); sxx = sx + 1; cs, ones, vRdy = R(), R(), R()
    X = [[R(4, 4) for _ in range(2)] for _ in range(2)]
    W = [[R(4, 4) for _ in range(2)] for _ in range(2)]
    acc = [[R(16, 4) for _ in range(2)] for _ in range(2)]
    T = R(40, 4)
    A('v_mov_b32 v3, 0')
    A(f'buffer_load_dword v{vRdy}, v3, {sr(SC)}, 0 offen sc1')
    A('s_and_b32 s32, s3, 1')
    A('s_lshr_b32 s33, s3, 1')
    A(f'v_and_b32 v3, 31, v{VL}')
    A(f'v_lshrrev_b32 v4, 5, v{VL}')
    A(f'v_bfe_u32 v5, v{VL}, 1, 3')
    A('v_xor_b32 v5, v4, v5')
    A('v_lshlrev_b32 v5, 4, v5')
    A('v_lshl_add_u32 v5, v3, 7, v5')
    A('s_lshl_b32 s34, s32, 1')
    A('s_add_u32 s44, s34, s33')
    A('s_xor_b32 s45, s44, 1')
    A('s_lshl_b32 s34, s33, 1')
    A('s_add_u32 s46, s34, s32')
    A('s_xor_b32 s47, s46, 1')
    for tt in range(2):
        A(f's_lshl_b32 s34, s{44+tt}, 12')
        A(f'v_add_u32 v{vA[tt][0]}, s34, v5')
        for s_ in range(1, 4):
            A(f'v_xor_b32 v{vA[tt][s_]}, {32*s_}, v{vA[tt][0]}')
    A(f'v_bfe_u32 v5, v{VL}, 2, 2')
    A('v_lshl_add_u32 v6, v4, 3, v5')
    A('v_lshlrev_b32 v6, 8, v6')
    A(f'v_bfe_u32 v7, v{VL}, 4, 1')
    A('v_lshl_add_u32 v6, v7, 5, v6')
    A(f'v_and_b32 v7, 3, v{VL}')
    A('v_lshl_add_u32 v6, v7, 3, v6')
    A('v_add_u32 v6, 16384, v6')
    for ft in range(2):
        A(f'v_xor_b32 v7, s{46+ft}, v5')
        A(f'v_lshl_add_u32 v{vB[ft]}, v7, 6, v6')
    A(f'v_mov_b32 v{sx}, 0'); A(f'v_mov_b32 v{sxx}, 0'); A(f'v_mov_b32 v{cs}, 0')
    A(f'v_mov_b32 v{ones}, {ONES:#x}')
    for i in range(64): A(f'v_mov_b32 v{acc[0][0]+i}, 0')
    A('s_lshl_b32 s42, s30, 2')
    A('s_mul_i32 s52, s30, 10')
    A('s_add_u32 s52, s52, s29')
    A('s_lshl_b32 s52, s52, 10')
    A('s_lshl_b32 s34, s44, 8')
    A('s_add_u32 s52, s52, s34')
    A(f's_add_u32 s52, s52, {WS_RS}')
    A('s_mul_i32 s53, s31, 10')
    A('s_add_u32 s53, s53, s29')
    A('s_lshl_b32 s53, s53, 9')
    A('s_lshl_b32 s34, s46, 7')
    A('s_add_u32 s53, s53, s34')
    A(f's_add_u32 s53, s53, {WS_CQ}')
    A('s_cmp_ge_u32 s31, 10')
    A('s_cbranch_scc1 qkv_vpath')

    def reads(buf, slot, s_):
        o = (slot & 1) * STG
        r = []
        for tt in range(2):
            r.append(f'ds_read_b128 {v(X[buf][tt],4)}, v{vA[tt][s_]} offset:{o}')
        for ft in range(2):
            for jh in range(2):
                r.append(f'ds_read_b64_tr_b16 {v(W[buf][ft]+2*jh,2)}, v{vB[ft]} offset:{o + s_*4096 + jh*1024}')
        return r
    def mfmas(buf, vpath):
        r = []
        for tt in range(2):
            for ft in range(2):
                a_, b_ = (X[buf][tt], W[buf][ft]) if vpath else (W[buf][ft], X[buf][tt])
                r.append(f'v_mfma_f32_32x32x16_bf16 {v(acc[tt][ft],16)}, {v(a_,4)}, {v(b_,4)}, {v(acc[tt][ft],16)}')
        return r
    def stage(st, vpath, dots=False, pre_barrier=None):
        for s_ in range(4):
            buf = s_ & 1
            A('s_waitcnt lgkmcnt(0)')
            fill = []
            if s_ == 3:
                if pre_barrier: pre_barrier()
                A('s_barrier')
                if st == 1:
                    fill += [f'v_xor_b32 v{r_}, 0x10000, v{r_}' for r_ in [vA[0][0], vA[1][0]] + vB]
                fill += reads(buf ^ 1, st + 1, 0)
                if st == 1:
                    fill += [f'v_xor_b32 v{r_}, 0x10000, v{r_}' for r_ in vA[0][1:] + vA[1][1:]]
            else:
                fill += reads(buf ^ 1, st, s_ + 1)
            for x in interleave(mfmas(buf, vpath), fill): A(x)
            if dots:
                for j in range(4):
                    A(f'v_dot2_f32_bf16 v{sx}, v{X[buf][0]+j}, v{ones}, v{sx}')
                    A(f'v_dot2_f32_bf16 v{sxx}, v{X[buf][0]+j}, v{X[buf][0]+j}, v{sxx}')
                    A(f'v_dot2_f32_bf16 v{cs}, v{W[buf][0]+j}, v{ones}, v{cs}')
    def publish():
        A(f'v_lshlrev_b32 v5, 2, v{VL}')
        A('v_lshlrev_b32 v6, 2, v3')
        A('s_nop 0')
        A(f'v_mov_b32 v{T}, v{cs}')
        A('s_nop 1')
        A(f'v_permlane32_swap_b32 v{sx}, v{sxx}')
        A(f'v_permlane32_swap_b32 v{cs}, v{T}')
        A(f'v_add_f32 v{sx}, v{sx}, v{sxx}')
        A(f'v_add_f32 v{cs}, v{cs}, v{T}')
        L1, L2 = A.label('nor'), A.label('noc')
        A('s_cmp_ge_u32 s31, 10')
        A(f's_cbranch_scc1 {L1}')
        A(f'buffer_store_dword v{sx}, v5, {sr(SW)}, s52 offen sc1')
        A(f'{L1}:')
        A('s_cmp_ge_u32 s30, 10')
        A(f's_cbranch_scc1 {L2}')
        A(f'buffer_store_dword v{cs}, v6, {sr(SW)}, s53 offen sc1')
        A(f'{L2}:')
    def drain_pub():
        A('s_waitcnt vmcnt(0)')
        L = A.label('nr')
        A('s_cmp_lg_u32 s3, 0')
        A(f's_cbranch_scc1 {L}')
        wait_ready(A, T, vRdy, first_issued=True)
        A(f'{L}:')
    def mainloop(vpath, tag):
        A('s_barrier')
        stamp(A, 1, 1, T)
        for x in reads(0, 0, 0): A(x)
        stage(0, vpath, dots=True)
        publish()
        stage(1, vpath)
        A('s_mov_b32 s48, 4')
        A(f'qkv_loop_{tag}:')
        stage(0, vpath, pre_barrier=drain_pub)
        stage(1, vpath)
        A('s_sub_u32 s48, s48, 1')
        A('s_cmp_lg_u32 s48, 0')
        A(f's_cbranch_scc1 qkv_loop_{tag}')
        stamp(A, 1, 2, T+30)
    ms = [T+0, T+2]; csf = [T+4, T+5]
    EX = [T+8, T+10]; EW = [T+12, T+14]
    def rank1(vpath):
        A('v_lshlrev_b32 v5, 3, v3')
        A('v_lshlrev_b32 v7, 2, v3')
        for tt in range(2):
            A(f's_lshl_b32 s34, s{44+tt}, 8')
            A(f's_add_u32 s34, s34, {LST}')
            A('v_add_u32 v6, s34, v5')
            A(f'ds_read_b64 {v(ms[tt],2)}, v6')
        for ft in range(2):
            A(f's_lshl_b32 s34, s{46+ft}, 7')
            A(f's_add_u32 s34, s34, {LST+1024}')
            A('v_add_u32 v6, s34, v7')
            A(f'ds_read_b32 v{csf[ft]}, v6')
        A('s_waitcnt lgkmcnt(0)')
        for tt in range(2): ext_tok(A, ms[tt], EX[tt], T+16, T+17, M32)
        for ft in range(2): ext_feat(A, csf[ft], EW[ft], T+16, T+17)
        A('s_nop 1')
        for tt in range(2):
            for ft in range(2):
                a_, b_ = (EX[tt], EW[ft]) if vpath else (EW[ft], EX[tt])
                A(f'v_mfma_f32_32x32x8bf16_1k {v(acc[tt][ft],16)}, {v(a_,2)}, {v(b_,2)}, {v(acc[tt][ft],16)}')
    A('s_cmp_ge_u32 s31, 5')
    A('s_cselect_b32 s34, 5, 0')
    A('s_mov_b32 s35, 81920'); A('s_cmov_b32 s35, 163840')
    A('s_mov_b32 s36, 1280'); A('s_cmov_b32 s36, 2560')
    A(f's_cselect_b32 s37, {WS_KV}, {WS_Q}')
    A(f's_cselect_b32 s49, {f2u(1.0):#x}, {f2u(QSCALE):#x}')
    A('s_sub_u32 s34, s31, s34')
    A('s_lshl_b32 s34, s34, 5')
    for ft in range(2):
        A(f's_lshl_b32 s38, s{46+ft}, 3')
        A('s_add_u32 s38, s38, s34')
        for q in range(4):
            d = vSt[ft*4+q]
            A(f'v_add_u32 v5, {2*q}, v4')
            A('v_add_u32 v5, s38, v5')
            A('v_mul_u32_u24 v6, 205, v5')
            A('v_lshrrev_b32 v6, 10, v6')
            A('v_mul_u32_u24 v7, 5, v6')
            A('v_sub_u32 v5, v5, v7')
            A('v_mul_lo_u32 v6, v6, s35')
            A('v_lshl_add_u32 v6, v5, 8, v6')
            A(f'v_lshl_add_u32 v{d}, v3, 3, v6')
    for tt in range(2):
        A(f's_add_u32 s38, s42, s{44+tt}')
        A('s_mul_i32 s38, s38, s36')
        A(f's_add_u32 s{50+tt}, s38, s37')
    mainloop(False, 'qk')
    rank1(False)
    for tt in range(2):
        A(f'v_mul_f32 v{ms[tt]+1}, s49, v{ms[tt]+1}')
        A(f'v_mov_b32 v{ms[tt]}, v{ms[tt]+1}')
    A('s_nop 5')
    k = 0
    for tt in range(2):
        for ft in range(2):
            for q in range(4):
                b = acc[tt][ft] + 4*q
                for i in (0, 2): A(f'v_pk_mul_f32 {v(b+i,2)}, {v(b+i,2)}, {v(ms[tt],2)}')
                d = T + 16 + 2*(k % 8); k += 1
                A(f'v_cvt_pk_bf16_f32 v{d}, v{b}, v{b+1}')
                A(f'v_cvt_pk_bf16_f32 v{d+1}, v{b+2}, v{b+3}')
                A(f'buffer_store_dwordx2 {v(d,2)}, v{vSt[ft*4+q]}, {sr(SW)}, s{50+tt} offen {SC1}')
    A('s_branch qkv_out')
    A('qkv_vpath:')
    A('s_sub_u32 s34, s31, 10')
    A('s_lshl_b32 s34, s34, 7')
    A('s_mov_b32 s35, 163840')
    for ft in range(2):
        A(f's_lshl_b32 s38, s{46+ft}, 5')
        A('s_add_u32 s38, s38, s34')
        A('v_add_u32 v5, s38, v3')
        A('v_mul_u32_u24 v6, 3277, v5')
        A('v_lshrrev_b32 v6, 16, v6')
        A('v_mul_u32_u24 v7, 20, v6')
        A('v_sub_u32 v5, v5, v7')
        A('v_mul_lo_u32 v6, v6, s35')
        A('v_lshl_add_u32 v6, v5, 4, v6')
        A('v_mul_u32_u24 v7, 320, v4')
        A(f'v_add_u32 v{vSt[ft]}, v6, v7')
    for tt in range(2):
        A(f's_add_u32 s38, s42, s{44+tt}')
        A('s_mul_i32 s38, s38, 2560')
        A(f's_add_u32 s{50+tt}, s38, {WS_KV+1280}')
    mainloop(True, 'v')
    rank1(True)
    RS = X[0][0]
    k = 0
    for tt in range(2):
        A(f's_lshl_b32 s34, s{44+tt}, 8')
        A(f's_add_u32 s34, s34, {LST}')
        A('v_lshl_add_u32 v5, v4, 5, s34')
        for q in range(4):
            A(f'ds_read_b128 {v(RS+8*q,4)}, v5 offset:{64*q}')
            A(f'ds_read_b128 {v(RS+8*q+4,4)}, v5 offset:{64*q+16}')
        A('s_waitcnt lgkmcnt(0)')
        if tt == 0: A('s_nop 3')
        for ft in range(2):
            for m in range(2):
                b = acc[tt][ft] + 8*m
                for i in range(8): A(f'v_mul_f32 v{b+i}, v{RS+16*m+2*i+1}, v{b+i}')
                d = T + 16 + 4*(k % 4); k += 1
                for i in range(4): A(f'v_cvt_pk_bf16_f32 v{d+i}, v{b+2*i}, v{b+2*i+1}')
                A(f'buffer_store_dwordx4 {v(d,4)}, v{vSt[ft]}, {sr(SW)}, s{50+tt} offen offset:{640*m} {SC1}')
    A('qkv_out:')
    stamp(A, 1, 3, T)
    A('s_waitcnt vmcnt(0)')
    stamp(A, 1, 4, T)
    A('L_h1:')
    A('s_barrier')
    A('s_and_b32 s21, s2, 7')
    A('s_lshl_b32 s22, s21, 3')
    signal_wait(A, 4, 21, 8, 8, 22, 8, 30, 4)
    A('s_branch L_att')
    A('L_h1_spare:')
    A('s_barrier')
    A('s_and_b32 s21, s2, 7')
    A('s_lshl_b32 s22, s21, 3')
    signal_wait(A, 4, 21, 8, 8, 22, 8, 30, 4, do_signal=False)

PANEL = 61440
def maps_att(A):
    if OPT.get('map', 'g') == 'g':
        A('s_and_b32 s31, s2, 7')
        A('s_lshr_b32 s30, s2, 3')
    else:
        A('s_and_b32 s20, s2, 7')
        A('s_lshr_b32 s21, s2, 3')
        A('s_lshl_b32 s30, s20, 2')
        A('s_and_b32 s22, s21, 3')
        A('s_add_u32 s30, s30, s22')
        A('s_lshr_b32 s31, s21, 2')
def maps_sk(A, rt, ft):
    A('s_and_b32 s20, s2, 7')
    A('s_lshr_b32 s21, s2, 3')
    if OPT.get('map', 'g') == 'g':
        A(f's_lshl_b32 s{rt}, s20, 2')
        A('s_lshr_b32 s22, s21, 3')
        A(f's_add_u32 s{rt}, s{rt}, s22')
        A(f's_and_b32 s{ft}, s21, 7')
    else:
        A('s_lshr_b32 s22, s20, 1')
        A(f's_lshl_b32 s{rt}, s22, 3')
        A('s_lshr_b32 s22, s21, 2')
        A(f's_add_u32 s{rt}, s{rt}, s22')
        A('s_and_b32 s22, s20, 1')
        A(f's_lshl_b32 s{ft}, s22, 2')
        A('s_and_b32 s22, s21, 3')
        A(f's_add_u32 s{ft}, s{ft}, s22')
def maps_gu(A, rt, ct):
    A('s_and_b32 s20, s2, 7')
    A('s_lshr_b32 s21, s2, 3')
    if OPT.get('map', 'g') == 'g':
        A(f's_lshl_b32 s{rt}, s20, 1')
        A('s_lshr_b32 s22, s21, 4')
        A(f's_add_u32 s{rt}, s{rt}, s22')
        A(f's_and_b32 s{ct}, s21, 15')
    else:
        A('s_lshr_b32 s22, s20, 1')
        A(f's_lshl_b32 s{rt}, s22, 2')
        A('s_lshr_b32 s22, s21, 3')
        A(f's_add_u32 s{rt}, s{rt}, s22')
        A('s_and_b32 s22, s20, 1')
        A(f's_lshl_b32 s{ct}, s22, 3')
        A('s_and_b32 s22, s21, 7')
        A(f's_add_u32 s{ct}, s{ct}, s22')

def prep_load(A, PT):
    a6, a7 = PT+10, PT+11
    A('s_mul_i32 s60, s3, 5120')
    A(f's_add_u32 s60, s60, {PANEL}')
    A('s_cmp_ge_u32 s2, 188')
    A('s_cbranch_scc1 prep_l_done')
    A('s_cmp_ge_u32 s2, 120')
    A('s_cbranch_scc1 prep_l_sk')
    A(f's_load_dwordx2 s[{SA}:{SA+1}], s[0:1], 32')
    A(f's_load_dwordx2 s[{SB}:{SB+1}], s[0:1], 40')
    div_magic(A, 61, 2, 5)
    A('s_mul_i32 s62, s61, 5')
    A('s_sub_u32 s62, s2, s62')
    A('s_lshl_b32 s63, s62, 3')
    A('s_add_u32 s63, s63, s3')
    A(f'v_lshrrev_b32 v{a6}, 3, v{VL}')
    A(f'v_mul_u32_u24 v{a6}, 3072, v{a6}')
    A(f'v_and_b32 v{a7}, 7, v{VL}')
    A(f'v_lshl_add_u32 v{a6}, v{a7}, 4, v{a6}')
    A('s_mul_i32 s64, s63, 49152')
    A('s_lshl_b32 s65, s61, 7')
    A('s_add_u32 s64, s64, s65')
    A(f's_add_u32 s65, s64, {8*3072 - 1024}')
    A('s_mov_b32 m0, s60')
    A('s_waitcnt lgkmcnt(0)')
    srd(A, SA, SA, 640*1536*2)
    srd(A, SB, SB, 640*1536*2)
    A(f'buffer_load_dwordx4 v{a6}, {sr(SA)}, s64 offen lds')
    A(f'buffer_load_dwordx4 v{a6}, {sr(SA)}, s65 offen offset:1024 lds')
    A('s_add_u32 s66, s60, 2048')
    A('s_mov_b32 m0, s66')
    A('s_nop 0')
    A(f'buffer_load_dwordx4 v{a6}, {sr(SB)}, s64 offen lds')
    A(f'buffer_load_dwordx4 v{a6}, {sr(SB)}, s65 offen offset:1024 lds')
    A('s_branch prep_l_done')
    A('prep_l_sk:')
    for j in range(5):
        A(f'v_add_u32 v{a6}, {64*j}, v{VL}')
        A(f'v_mul_u32_u24 v{PT+j}, 6554, v{a6}')
        A(f'v_lshrrev_b32 v{PT+j}, 16, v{PT+j}')
        A(f'v_mul_u32_u24 v{a7}, 10, v{PT+j}')
        A(f'v_sub_u32 v{PT+5+j}, v{a6}, v{a7}')
    A('s_cmp_ge_u32 s2, 168')
    A('s_cbranch_scc1 prep_l_wo')
    A(f's_load_dwordx2 s[{SA}:{SA+1}], s[0:1], 48')
    A('s_sub_u32 s61, s2, 120')
    A('s_lshl_b32 s61, s61, 3')
    A('s_add_u32 s61, s61, s3')
    div_magic(A, 62, 61, 48)
    A('s_mul_i32 s63, s62, 48')
    A('s_sub_u32 s63, s61, s63')
    A('s_mul_i32 s64, s61, 5120')
    A(f's_add_u32 s64, s64, {WS_WD}')
    A('s_lshl_b32 s65, s63, 5')
    for j in range(5): A(f'v_add_u32 v{PT+j}, s65, v{PT+j}')
    A('s_waitcnt lgkmcnt(0)')
    srd(A, SA, SA, 1536*640*2)
    A('s_branch prep_l_sk2')
    A('prep_l_wo:')
    A(f's_load_dwordx2 s[{SA}:{SA+1}], s[0:1], 16')
    A('s_sub_u32 s61, s2, 168')
    A('s_lshl_b32 s61, s61, 3')
    A('s_add_u32 s61, s61, s3')
    div_magic(A, 62, 61, 20)
    A('s_mul_i32 s63, s62, 20')
    A('s_sub_u32 s63, s61, s63')
    A('s_mul_i32 s64, s61, 5120')
    A(f's_add_u32 s64, s64, {WS_WO}')
    A('s_waitcnt lgkmcnt(0)')
    srd(A, SA, SA, 640*640*2)
    A('s_cmp_ge_u32 s63, 16')
    A('s_cbranch_scc1 prep_l_rem')
    A('s_mul_i32 s65, s63, 40')
    for j in range(5):
        A(f'v_lshrrev_b32 v{a6}, 4, v{PT+j}')
        A(f'v_lshl_add_u32 v{PT+j}, v{a6}, 2, v{PT+j}')
        A(f'v_add_u32 v{PT+j}, s65, v{PT+j}')
    A('s_branch prep_l_sk2')
    A('prep_l_rem:')
    A('s_sub_u32 s65, s63, 16')
    A('s_mul_i32 s65, s65, 160')
    A('s_add_u32 s65, s65, 16')
    for j in range(5):
        A(f'v_bfe_u32 v{a6}, v{PT+j}, 4, 1')
        A(f'v_bfe_u32 v{a7}, v{PT+j}, 2, 1')
        A(f'v_lshl_add_u32 v{a6}, v{a6}, 1, v{a7}')
        A(f'v_bfe_u32 v{a7}, v{PT+j}, 3, 1')
        A(f'v_lshl_add_u32 v{a6}, v{a6}, 1, v{a7}')
        A(f'v_mul_u32_u24 v{a6}, 20, v{a6}')
        A(f'v_and_b32 v{a7}, 3, v{PT+j}')
        A(f'v_add3_u32 v{PT+j}, v{a6}, v{a7}, s65')
    A('prep_l_sk2:')
    A('s_mul_i32 s65, s62, 160')
    for j in range(5):
        A(f'v_mul_u32_u24 v{PT+j}, 1280, v{PT+j}')
        A(f'v_lshl_add_u32 v{PT+j}, v{PT+5+j}, 4, v{PT+j}')
    for j in range(5):
        A(f's_add_u32 s66, s60, {1024*j}')
        A('s_mov_b32 m0, s66')
        A('s_nop 0')
        A(f'buffer_load_dwordx4 v{PT+j}, {sr(SA)}, s65 offen lds')
    A('prep_l_done:')

CSL = PANEL + 40960
def prep_store(A, PT):
    F0 = PT; a6, a7, a8, on = PT+20, PT+21, PT+22, PT+23; c0 = PT+24
    A('s_cmp_ge_u32 s2, 188')
    A('s_cbranch_scc1 prep_s_done')
    A(f'v_and_b32 v3, 3, v{VL}')
    A(f'v_bfe_u32 v4, v{VL}, 2, 2')
    A(f'v_lshrrev_b32 v5, 4, v{VL}')
    A('s_cmp_ge_u32 s2, 120')
    A('s_cbranch_scc1 prep_s_sk')
    A(f'v_and_b32 v{a7}, 1, v5')
    A(f'v_lshrrev_b32 v{a8}, 1, v5')
    A(f'v_lshl_add_u32 v{a8}, v{a8}, 3, v4')
    A(f'v_lshlrev_b32 v{a8}, 7, v{a8}')
    A(f'v_lshl_add_u32 v{a8}, v{a7}, 11, v{a8}')
    A(f'v_lshl_add_u32 v{a8}, v3, 3, v{a8}')
    A(f'v_add_u32 v{a8}, s60, v{a8}')
    for m in range(4):
        A(f'ds_read_b64_tr_b16 {v(F0+4*m,2)}, v{a8} offset:{32*m}')
        A(f'ds_read_b64_tr_b16 {v(F0+4*m+2,2)}, v{a8} offset:{32*m+512}')
    A(f'v_mov_b32 v{on}, {ONES:#x}')
    A('s_waitcnt lgkmcnt(0)')
    for m in range(4):
        A('s_lshl_b32 s66, s61, 2')
        A(f's_add_u32 s66, s66, {m}')
        div_magic(A, 67, 66, 6)
        A('s_mul_i32 s68, s67, 6')
        A('s_sub_u32 s68, s66, s68')
        A('s_mul_i32 s67, s67, 40')
        A('s_add_u32 s67, s67, s63')
        A('s_mul_i32 s67, s67, 6')
        A('s_add_u32 s67, s67, s68')
        A('s_lshl_b32 s67, s67, 10')
        A(f's_add_u32 s67, s67, {WS_WGU}')
        A(f'buffer_store_dwordx4 {v(F0+4*m,4)}, v{VL16}, {sr(SW)}, s67 offen sc1')
    for m in range(4):
        A(f'v_dot2_f32_bf16 v{c0+m}, v{F0+4*m}, v{on}, 0')
        for j in range(1, 4):
            A(f'v_dot2_f32_bf16 v{c0+m}, v{F0+4*m+j}, v{on}, v{c0+m}')
    A('s_lshl_b32 s66, s3, 10')
    A(f's_add_u32 s66, s66, {CSL}')
    A(f'v_lshl_add_u32 v{a6}, v{VL}, 2, s66')
    A('s_nop 1')
    for m in range(4):
        A(f'ds_write_b32 v{a6}, v{c0+m} offset:{256*m}')
    A('s_branch prep_s_done')
    A('prep_s_sk:')
    A(f'v_lshrrev_b32 v{a6}, 1, v5')
    A(f'v_and_b32 v{a7}, 1, v5')
    A(f'v_lshl_add_u32 v{a6}, v{a6}, 2, v{a7}')
    A(f'v_lshl_add_u32 v{a6}, v{a6}, 2, v4')
    A(f'v_mul_u32_u24 v{a6}, 160, v{a6}')
    A(f'v_add_u32 v{a6}, s60, v{a6}')
    A(f'v_lshl_add_u32 v{a8}, v3, 4, v{a6}')
    A(f'v_lshl_add_u32 v{a7}, v3, 3, v{a6}')
    for F in range(5):
        ar, co = (a8, 64*(F//2) + 8*(F%2)) if F < 4 else (a7, 128)
        A(f'ds_read_b64_tr_b16 {v(F0+4*F,2)}, v{ar} offset:{co}')
        A(f'ds_read_b64_tr_b16 {v(F0+4*F+2,2)}, v{ar} offset:{co+1280}')
    A('s_add_u32 s66, s64, 4096')
    A('s_waitcnt lgkmcnt(0)')
    for F in range(4):
        A(f'buffer_store_dwordx4 {v(F0+4*F,4)}, v{VL16}, {sr(SW)}, s64 offen offset:{1024*F} sc1')
    A(f'buffer_store_dwordx4 {v(F0+16,4)}, v{VL16}, {sr(SW)}, s66 offen sc1')
    A('prep_s_done:')

def prep_colsum(A, PT):
    A('s_cmp_ge_u32 s2, 120')
    A('s_cbranch_scc1 prep_c_done')
    A('s_cmp_ge_u32 s3, 2')
    A('s_cbranch_scc1 prep_c_done')
    A('v_lshrrev_b32 v3, 5, v0')
    A('v_and_b32 v4, 31, v0')
    A('v_lshlrev_b32 v3, 8, v3')
    A('v_lshl_add_u32 v3, v4, 2, v3')
    A(f'v_add_u32 v3, {CSL}, v3')
    for w in range(8):
        if w == 4: A('s_waitcnt lgkmcnt(4)')
        for h in range(2):
            A(f'ds_read_b32 v{PT+2*w+h}, v3 offset:{1024*w+128*h}')
    A('s_mul_i32 s66, s62, 12288')
    A('s_lshl_b32 s67, s61, 9')
    A('s_add_u32 s66, s66, s67')
    A(f's_add_u32 s66, s66, {WS_CS}')
    A('v_lshlrev_b32 v4, 2, v0')
    A('s_waitcnt lgkmcnt(0)')
    for i in range(1, 16): A(f'v_add_f32 v{PT}, v{PT}, v{PT+i}')
    A(f'buffer_store_dword v{PT}, v4, {sr(SW)}, s66 offen sc1')
    A('prep_c_done:')

def ph_att(A):
    SLOT = 20480
    R = Alloc(V0, 256)
    Q16 = [R(4, 4) for _ in range(2)]; Q8 = [R(2) for _ in range(2)]
    S = [R(16, 4) for _ in range(2)]
    P = [R(8, 4) for _ in range(2)]
    O = [R(16, 4) for _ in range(2)]
    K16 = [R(4, 4) for _ in range(2)]; K8 = [R(2) for _ in range(2)]
    V = [R(8, 4) for _ in range(2)]
    aK, aK8, aV, vPa, vPd = R(), R(), R(), R(), R()
    T = R(8, 4)
    PT = R(28, 4)
    XR = R(12, 4)
    vm = VM(A)
    A('L_att:')
    stamp(A, 2, 0, T)
    maps_att(A)
    A('s_and_b32 s32, s3, 3')
    A('s_lshr_b32 s33, s3, 2')
    A('s_mul_i32 s36, s30, 163840')
    A(f's_add_u32 s36, s36, {WS_KV}')
    A('s_lshl_b32 s37, s33, 5')
    A('s_add_u32 s37, s37, s32')
    A('s_mul_i32 s37, s37, 2560')
    A('s_add_u32 s37, s37, s36')
    A('s_mul_i32 s38, s3, 2560')
    KVF = SC1 + (' nt' if 'kvnt' in OPT else '')
    def dma(st, j):
        r = [f's_add_u32 s39, s38, {(st % 3)*SLOT}', 's_mov_b32 m0, s39']
        if j == 2: r.append(f's_mov_b64 exec, s[{M32}:{M32+1}]')
        else: r.append('s_nop 0')
        r.append((f'buffer_load_dwordx4 v{VL16}, {sr(SW)}, s37 offen offset:{1024*j} {KVF} lds', f'kv{st}'))
        if j == 2: r += ['s_mov_b64 exec, -1', 's_add_u32 s37, s37, 10240']
        return r
    def emit(lst):
        for x in lst:
            if isinstance(x, tuple): vm(*x)
            elif callable(x): x()
            else: A(x)
    for j in range(3): emit(dma(0, j))
    A('s_lshl_b32 s34, s31, 3')
    A('s_lshl_b32 s35, s32, 1')
    A('s_add_u32 s34, s34, s35')
    A('s_mul_i32 s39, s30, 64')
    A('s_add_u32 s39, s39, s34')
    A('s_mul_i32 s39, s39, 1280')
    A(f's_add_u32 s40, s39, {WS_Q}')
    A(f'v_lshlrev_b32 v5, 3, v{VL}')
    for x in range(2):
        A(f'v_mov_b32 v{Q8[x]}, 0'); A(f'v_mov_b32 v{Q8[x]+1}, 0')
    for x in range(2):
        vm(f'buffer_load_dwordx2 {v(Q16[x],2)}, v5, {sr(SW)}, s40 offen offset:{1280*x} {SC1}', 'kv0')
        vm(f'buffer_load_dwordx2 {v(Q16[x]+2,2)}, v5, {sr(SW)}, s40 offen offset:{1280*x+512} {SC1}', 'kv0')
    A(f's_mov_b64 exec, s[{M32}:{M32+1}]')
    for x in range(2):
        vm(f'buffer_load_dwordx2 {v(Q8[x],2)}, v5, {sr(SW)}, s40 offen offset:{1280*x+1024} {SC1}', 'kv0')
    A('s_mov_b64 exec, -1')
    for j in range(3): emit(dma(1, j))
    A(f'v_and_b32 v3, 31, v{VL}')
    A(f'v_lshrrev_b32 v4, 5, v{VL}')
    A('s_mul_i32 s44, s33, 10240')
    A(f'v_add_u32 v{aK}, s44, v5')
    A('v_mul_u32_u24 v7, 320, v4')
    A('v_lshl_add_u32 v7, v3, 4, v7')
    A(f'v_add_u32 v{aV}, s44, v7')
    A('s_mov_b32 s46, 0x11000000'); A('s_mov_b32 s47, 0x11000000')
    A(f'v_mov_b32 v6, {ONES:#x}')
    A(f'v_cndmask_b32_e64 v7, 0, v6, s[46:47]')
    for b in range(2):
        for i in range(8): A(f'v_mov_b32 v{V[b]+i}, v7')
        A(f'v_mov_b32 v{K8[b]}, v6')
        A(f'v_mov_b32 v{K8[b]+1}, 0')
    for x in range(2):
        for i in range(16): A(f'v_mov_b32 v{O[x]+i}, 0')
    for i in range(4): A(f'v_mov_b32 v{P[1]+4+i}, 0')
    vm.wait('kv0')
    A('s_barrier')
    stamp(A, 2, 1, T)
    A(f'ds_read2st64_b64 {v(K16[1],4)}, v5 offset0:0 offset1:1')
    A(f'ds_read2st64_b64 {v(K16[0],4)}, v{aK} offset0:0 offset1:1')
    A(f's_mov_b64 exec, s[{M32}:{M32+1}]')
    A(f'ds_read_b64 {v(K8[1],2)}, v5 offset:1024')
    A(f'ds_read_b64 {v(K8[0],2)}, v{aK} offset:1024')
    A(f's_mov_b64 exec, s[{MD20}:{MD20+1}]')
    A(f'ds_read_b128 {v(V[0],4)}, v{aV} offset:1280')
    A(f'ds_read_b128 {v(V[0]+4,4)}, v{aV} offset:1920')
    A('s_mov_b64 exec, -1')
    A('s_waitcnt lgkmcnt(3)')
    for x in range(2):
        A(f'v_mfma_f32_32x32x16_bf16 {v(S[x],16)}, {v(K16[1],4)}, {v(Q16[x],4)}, 0')
    for x in range(2):
        A(f'v_mfma_f32_32x32x8bf16_1k {v(S[x],16)}, {v(K8[1],2)}, {v(Q8[x],2)}, {v(S[x],16)}')
    for j in range(3): emit(dma(2, j))
    prep_load(A, PT)
    def rowmax(dst, src, t):
        A(f'v_max3_f32 v{dst}, v{src}, v{src+1}, v{src+2}')
        for i in range(3, 15, 2):
            A(f'v_max3_f32 v{dst}, v{src+i}, v{src+i+1}, v{dst}')
        A(f'v_max_f32 v{dst}, v{src+15}, v{dst}')
        A(f'v_mov_b32 v{t}, v{dst}')
        A('s_nop 1')
        A(f'v_permlane32_swap_b32 v{dst}, v{t}')
        A(f'v_max_f32 v{dst}, v{dst}, v{t}')
    A('s_nop 7')
    for x in range(2):
        rowmax(T, S[x], T+1)
        A(f'v_sub_f32 v{T}, 0, v{T}')
        A(f'v_and_b32 v{T+1}, 0xffff0000, v{T}')
        A(f'v_sub_f32 v{T}, v{T}, v{T+1}')
        A(f'v_cvt_pk_bf16_f32 v{T}, v{T+1}, v{T}')
        A(f'v_cndmask_b32_e64 v{Q8[x]}, v{T}, v{Q8[x]}, s[{M32}:{M32+1}]')
    A('s_waitcnt lgkmcnt(0)')
    A(f'v_mfma_f32_32x32x16_bf16 {v(S[0],16)}, {v(K16[0],4)}, {v(Q16[0],4)}, 0')
    A(f'v_mfma_f32_32x32x8bf16_1k {v(S[0],16)}, {v(K8[0],2)}, {v(Q8[0],2)}, {v(S[0],16)}')
    maps_sk(A, 70, 71)
    A('s_mul_i32 s72, s71, 102400')
    A('s_mul_i32 s73, s3, 12800')
    A('s_add_u32 s72, s72, s73')
    A(f's_add_u32 s72, s72, {WS_WO}')
    A(f's_add_u32 s73, s73, {PANEL}')
    A(f'v_lshlrev_b32 v{vPa}, 7, v{VL}')
    A(f'v_add_u32 v{vPa}, {WS_CNT + 128*L_P}, v{vPa}')
    A('s_nop 4')
    def panel(j):
        r = []
        if j % 4 == 0 and j: r += ['s_add_u32 s72, s72, 4096', 's_add_u32 s73, s73, 4096']
        r += ['s_mov_b32 m0, s73']
        r.append(f's_mov_b64 exec, s[{M32}:{M32+1}]' if j == 12 else 's_nop 0')
        r.append((f'buffer_load_dwordx4 v{VL16}, {sr(SW)}, s72 offen offset:{1024*(j%4)} {SC1} lds', 'panel'))
        if j == 12: r.append('s_mov_b64 exec, -1')
        return r
    extra = {i: [] for i in range(64)}
    for st in range(1, 6):
        for j in range(3): extra[8*st - 1 + 2*j].append(dma(st + 2, j))
    for j in range(13): extra[39 + (j*22)//13 + 1].append(panel(j))
    def only_wave(w, fn):
        def f():
            L = A.label('ow')
            A(f's_cmp_lg_u32 s3, {w}')
            A(f's_cbranch_scc1 {L}')
            fn()
            A(f'{L}:')
        return f
    def sigP():
        A('s_and_b32 s20, s2, 7')
        A('s_lshl_b32 s20, s20, 7')
        A(f's_add_u32 s20, s20, {WS_CNT + 128*L_P}')
        A(f'v_mov_b32 v{PT}, 0'); A(f'v_mov_b32 v{PT+1}, 1')
        A('s_mov_b64 exec, 1')
        A(f'buffer_atomic_add v{PT+1}, v{PT}, {sr(SW)}, s20 offen sc1')
        A('s_mov_b64 exec, -1')
    def pollP():
        A('s_mov_b64 exec, 0xff')
        A(f'buffer_load_dword v{vPd}, v{vPa}, {sr(SW)}, 0 offen sc1')
        A('s_mov_b64 exec, -1')
    def xres():
        load_ptr_srd(A, SA, 0, 2048*640*2)
        A('s_lshl_b32 s74, s70, 6')
        A('s_lshl_b32 s75, s32, 4')
        A('s_add_u32 s74, s74, s75')
        A('s_mul_i32 s74, s74, 1280')
        A('s_mul_i32 s75, s71, 160')
        A('s_add_u32 s74, s74, s75')
        A(f'v_and_b32 v3, 15, v{VL}')
        A(f'v_lshrrev_b32 v4, 4, v{VL}')
        A('v_mul_u32_u24 v5, 1280, v3')
        A('v_lshl_add_u32 v6, v4, 4, v5')
        A('v_lshl_add_u32 v7, v4, 3, v5')
        vm(f'buffer_load_dwordx4 {v(XR,4)}, v6, {sr(SA)}, s74 offen', 'x')
        vm(f'buffer_load_dwordx4 {v(XR+4,4)}, v6, {sr(SA)}, s74 offen offset:64', 'x')
        vm(f'buffer_load_dwordx2 {v(XR+8,2)}, v7, {sr(SA)}, s74 offen offset:128', 'x')
    extra[45].append([xres])
    for it in range(64):
        st, tl, x = it >> 3, (it >> 1) & 3, it & 1
        cur, nxt = S[x], S[x ^ 1]
        kb = (tl + x) & 1
        e = lambda i: f'v_exp_f32 v{cur+i}, v{cur+i}'
        c = lambda j: f'v_cvt_pk_bf16_f32 v{P[x]+j}, v{cur+2*j}, v{cur+2*j+1}'
        post = []
        if tl == 3 and x == 0:
            b = st + 1
            if b == 1:
                vm.wait('kv1', 'lgkmcnt(0)')
            elif b == 2:
                vm.wait_all('lgkmcnt(0)')
                prep_store(A, PT)
                A('s_waitcnt lgkmcnt(0)')
                post = [lambda: prep_colsum(A, PT)]
            elif b == 3:
                vm.wait_all('lgkmcnt(0)')
                post = [only_wave(1, sigP)]
            elif b == 5:
                vm.wait_all('lgkmcnt(0)')
                only_wave(2, lambda: spin(A, vPa, vPd, 32, '0xff', first_issued=True))()
            elif b <= 7:
                vm.wait(f'kv{b}', 'lgkmcnt(0)')
            else:
                A('s_waitcnt lgkmcnt(0)')
            A('s_barrier')
        elif it > 0:
            A('s_waitcnt lgkmcnt(0)')
        last = it == 63
        gt = st*4 + tl + 1
        ts, tn = (gt >> 2) % 3, gt & 3
        if not last:
            A(f'v_mfma_f32_32x32x16_bf16 {v(nxt,16)}, {v(K16[kb],4)}, {v(Q16[x^1],4)}, 0')
        if gt < 32:
            o = ts*SLOT + tn*2560
            if x == 0:
                A(f'ds_read2st64_b64 {v(K16[(tl+1)&1],4)}, v{aK} offset0:{o//512} offset1:{o//512+1}')
            else:
                A(f's_mov_b64 exec, s[{MD20}:{MD20+1}]')
                A(f'ds_read_b128 {v(V[(tl+1)&1],4)}, v{aV} offset:{o+1280}')
                A(f'ds_read_b128 {v(V[(tl+1)&1]+4,4)}, v{aV} offset:{o+1920}')
                A('s_mov_b64 exec, -1')
        for y in (e(0), e(1), e(2), c(0), e(3)): A(y)
        if not last:
            A(f'v_mfma_f32_32x32x8bf16_1k {v(nxt,16)}, {v(K8[kb],2)}, {v(Q8[x^1],2)}, {v(nxt,16)}')
        for y in (e(4), c(1), e(5), e(6), c(2), e(7)): A(y)
        vprev = V[tl & 1] if x == 1 else V[(tl - 1) & 1]
        A(f'v_mfma_f32_32x32x16_bf16 {v(O[x^1],16)}, {v(vprev+4,4)}, {v(P[x^1]+4,4)}, {v(O[x^1],16)}')
        if x == 0 and gt < 32:
            A(f's_mov_b64 exec, s[{M32}:{M32+1}]')
            A(f'ds_read_b64 {v(K8[(tl+1)&1],2)}, v{aK} offset:{o+1024}')
            A('s_mov_b64 exec, -1')
        for lst in extra[it]: emit(lst)
        for y in (e(8), c(3), e(9), e(10), c(4), e(11)): A(y)
        A(f'v_mfma_f32_32x32x16_bf16 {v(O[x],16)}, {v(V[tl&1],4)}, {v(P[x],4)}, {v(O[x],16)}')
        for f in post: f()
        if it == 36: only_wave(2, pollP)()
        for y in (e(12), c(5), e(13), e(14), e(15), c(6), c(7)): A(y)
    A('s_lshl_b32 s46, s3, 12')
    A(f'v_add_u32 v5, s46, v{VL16}')
    A(f'v_mfma_f32_32x32x16_bf16 {v(O[1],16)}, {v(V[1]+4,4)}, {v(P[1]+4,4)}, {v(O[1],16)}')
    stamp(A, 2, 2, T)
    A('v_xor_b32 v6, 0x4000, v5')
    A('s_add_u32 s34, s34, s33')
    A('s_mul_i32 s47, s34, 40960')
    A(f's_add_u32 s47, s47, {WS_O}')
    A('s_lshl_b32 s48, s30, 10')
    A('s_add_u32 s48, s48, s47')
    A('s_lshr_b32 s49, s30, 1')
    A('s_lshl_b32 s49, s49, 9')
    A('s_and_b32 s50, s30, 1')
    A('s_lshl_b32 s50, s50, 3')
    A('s_add_u32 s49, s49, s50')
    A('s_add_u32 s49, s49, s47')
    A('s_add_u32 s49, s49, 32768')
    A(f's_mov_b32 s51, {f2u(2.0**40):#x}')
    A('s_cmp_eq_u32 s33, 0')
    A('s_cbranch_scc1 att_x0')
    for q in range(4): A(f'ds_write_b128 v5, {v(O[0]+4*q,4)} offset:{1024*q}')
    A('s_waitcnt lgkmcnt(0)')
    for i in range(13): A(f'v_mov_b32 v{O[0]+i}, v{O[1]+i}')
    for i in range(4): A(f'v_mov_b32 v{Q16[0]+i}, v{Q16[1]+i}')
    for i in range(2): A(f'v_mov_b32 v{Q8[0]+i}, v{Q8[1]+i}')
    A('s_branch att_x1')
    A('att_x0:')
    for q in range(4): A(f'ds_write_b128 v5, {v(O[1]+4*q,4)} offset:{1024*q}')
    A('s_waitcnt lgkmcnt(0)')
    A('att_x1:')
    A('s_barrier')
    for q in range(4): A(f'ds_read_b128 {v(S[0]+4*q,4)}, v6 offset:{1024*q}')
    A('s_waitcnt lgkmcnt(0)')
    for i in range(13): A(f'v_add_f32 v{O[0]+i}, v{O[0]+i}, v{S[0]+i}')
    A(f'v_cmp_nle_f32 vcc, v{O[0]+12}, s51')
    A('s_nop 4')
    A('s_cbranch_vccnz att_slow')
    A('att_fin:')
    A(f'v_rcp_f32 v{T}, v{O[0]+12}')
    A('s_nop 0')
    for i in range(12): A(f'v_mul_f32 v{O[0]+i}, v{T}, v{O[0]+i}')
    for j in range(6): A(f'v_cvt_pk_bf16_f32 v{P[0]+j}, v{O[0]+2*j}, v{O[0]+2*j+1}')
    A(f'buffer_store_dwordx4 {v(P[0],4)}, v{VL16}, {sr(SW)}, s48 offen {SC1}')
    A(f's_mov_b64 exec, s[{M32}:{M32+1}]')
    A(f'buffer_store_dwordx2 {v(P[0]+4,2)}, v{VL16}, {sr(SW)}, s49 offen {SC1}')
    A('s_mov_b64 exec, -1')
    stamp(A, 2, 3, T)

    def slow(A):
        A('att_slow:')
        m_, al = T+2, T+3
        A(f'v_and_b32 v3, 31, v{VL}')
        A(f'v_lshrrev_b32 v4, 5, v{VL}')
        A(f'v_lshlrev_b32 v5, 3, v{VL}')
        A('v_mul_u32_u24 v7, 320, v4')
        A('v_lshl_add_u32 v7, v3, 4, v7')
        A(f'v_cndmask_b32_e64 v{Q8[0]}, 0, v{Q8[0]}, s[{M32}:{M32+1}]')
        A(f'v_mov_b32 v{m_}, 0xff800000')
        for i in range(16): A(f'v_mov_b32 v{O[0]+i}, 0')
        A('s_mov_b32 s45, 0')
        A('att_slow_loop:')
        A(f'buffer_load_dwordx2 {v(K16[0],2)}, v5, {sr(SW)}, s36 offen sc1')
        A(f'buffer_load_dwordx2 {v(K16[0]+2,2)}, v5, {sr(SW)}, s36 offen offset:512 sc1')
        A(f's_mov_b64 exec, s[{M32}:{M32+1}]')
        A(f'buffer_load_dwordx2 {v(K8[0],2)}, v5, {sr(SW)}, s36 offen offset:1024 sc1')
        A(f's_mov_b64 exec, s[{MD20}:{MD20+1}]')
        A(f'buffer_load_dwordx4 {v(V[0],4)}, v7, {sr(SW)}, s36 offen offset:1280 sc1')
        A(f'buffer_load_dwordx4 {v(V[0]+4,4)}, v7, {sr(SW)}, s36 offen offset:1920 sc1')
        A('s_mov_b64 exec, -1')
        A('s_add_u32 s36, s36, 2560')
        A('s_waitcnt vmcnt(0)')
        A(f'v_mfma_f32_32x32x16_bf16 {v(S[0],16)}, {v(K16[0],4)}, {v(Q16[0],4)}, 0')
        A(f'v_mfma_f32_32x32x8bf16_1k {v(S[0],16)}, {v(K8[0],2)}, {v(Q8[0],2)}, {v(S[0],16)}')
        A('s_nop 15')
        rowmax(T, S[0], T+1)
        A(f'v_max_f32 v{T}, v{T}, v{m_}')
        A(f'v_sub_f32 v{al}, v{m_}, v{T}')
        A(f'v_exp_f32 v{al}, v{al}')
        A(f'v_mov_b32 v{m_}, v{T}')
        for i in range(16): A(f'v_sub_f32 v{S[0]+i}, v{S[0]+i}, v{m_}')
        for i in range(16): A(f'v_exp_f32 v{S[0]+i}, v{S[0]+i}')
        for i in range(16): A(f'v_mul_f32 v{O[0]+i}, v{al}, v{O[0]+i}')
        for j in range(8): A(f'v_cvt_pk_bf16_f32 v{P[0]+j}, v{S[0]+2*j}, v{S[0]+2*j+1}')
        A('s_nop 1')
        A(f'v_mfma_f32_32x32x16_bf16 {v(O[0],16)}, {v(V[0],4)}, {v(P[0],4)}, {v(O[0],16)}')
        A(f'v_mfma_f32_32x32x16_bf16 {v(O[0],16)}, {v(V[0]+4,4)}, {v(P[0]+4,4)}, {v(O[0],16)}')
        A('s_add_u32 s45, s45, 1')
        A('s_nop 15')
        A('s_cmp_lt_u32 s45, 64')
        A('s_cbranch_scc1 att_slow_loop')
        A('s_branch att_fin')
    return XR, slow

def finalize(A, Y, RES, t0):
    for j in range(10):
        A(f'v_lshlrev_b32 v{t0}, 16, v{RES+j}')
        A(f'v_and_b32 v{t0+1}, 0xffff0000, v{RES+j}')
        A(f'v_pk_add_f32 {v(Y+2*j,2)}, {v(Y+2*j,2)}, {v(t0,2)}')

GSTG, GNS, GNST = 20480, 7, 20
GTAB = GNS * GSTG
def ph_wo(A, XR):
    R = Alloc(V0, XR)
    vA, vR, vB = R(), R(), R()
    Af = R(40, 4)
    Bf = [R(20, 4) for _ in range(3)]
    Y = R(20, 4)
    SCR = 2 * GSTG
    A(f'v_and_b32 v3, 15, v{VL}')
    A(f'v_lshrrev_b32 v4, 4, v{VL}')
    A('v_lshlrev_b32 v5, 9, v4')
    A(f'v_lshl_add_u32 v{vA}, v3, 4, v5')
    A('s_mul_i32 s40, s33, 51200')
    A(f's_add_u32 s40, s40, {PANEL}')
    A(f'v_add_u32 v{vB}, s40, v{VL16}')
    A('s_lshl_b32 s34, s70, 1')
    A('s_bfe_u32 s35, s3, 0x10001')
    A('s_add_u32 s34, s34, s35')
    A('s_mul_i32 s76, s34, 40960')
    A('s_and_b32 s35, s3, 1')
    A('s_lshl_b32 s37, s35, 8')
    A('s_add_u32 s76, s76, s37')
    A('s_mul_i32 s41, s33, 20480')
    A('s_add_u32 s41, s41, s76')
    A(f's_add_u32 s41, s41, {WS_O}')
    A('s_mul_i32 s37, s71, 5120')
    A('s_add_u32 s76, s76, s37')
    A(f's_add_u32 s76, s76, {WS_H}')
    A('v_lshrrev_b32 v5, 1, v4')
    A('v_lshlrev_b32 v5, 9, v5')
    A('v_lshl_add_u32 v5, v3, 4, v5')
    A('v_and_b32 v6, 1, v4')
    A('v_lshl_add_u32 v5, v6, 3, v5')
    A(f'v_add_u32 v{vR}, 4096, v5')
    A('s_waitcnt vmcnt(0)')
    stamp(A, 2, 4, 4)
    A('s_barrier')
    def breads(S_): return [f'ds_read_b128 {v(Bf[S_%3]+4*F,4)}, v{vB} offset:{5120*S_ + 1024*F}' for F in range(5)]
    for S_ in range(2):
        for x in breads(S_): A(x)
    A(f's_add_u32 s21, s31, {L_H2}')
    A('s_lshr_b32 s22, s70, 2')
    A(f's_add_u32 s22, s22, {L_H2}')
    signal_wait(A, 0, 21, 1, 1, 22, 1, 32, 5)
    stamp(A, 3, 0, 5)
    for S_ in range(10):
        if S_ and S_ % 2 == 0: A('s_add_u32 s41, s41, 4096')
        A(f'buffer_load_dwordx4 {v(Af+4*S_,4)}, v{vA}, {sr(SW)}, s41 offen offset:{2048*(S_&1)} {SC1}')
    for S_ in range(10):
        A(f's_waitcnt vmcnt({9-S_}) lgkmcnt({5 if S_ < 9 else 0})')
        ms = [f'v_mfma_f32_16x16x32_bf16 {v(Y+4*F,4)}, {v(Bf[S_%3]+4*F,4)}, {v(Af+4*S_,4)}, ' + ('0' if S_ == 0 else v(Y+4*F,4)) for F in range(5)]
        for x in interleave(ms, breads(S_+2) if S_+2 < 10 else []): A(x)
    stamp(A, 3, 1, 5)
    A('s_mul_i32 s40, s32, 5120')
    A(f's_add_u32 s40, s40, {SCR}')
    A(f'v_add_u32 v5, s40, v{VL16}')
    A('s_cmp_eq_u32 s33, 0')
    A('s_cbranch_scc1 wo_fin')
    A('s_nop 3')
    for F in range(5): A(f'ds_write_b128 v5, {v(Y+4*F,4)} offset:{1024*F}')
    A('s_waitcnt lgkmcnt(0)')
    A('s_barrier')
    A('s_branch gu_loader')
    A('wo_fin:')
    A('s_nop 3')
    finalize(A, Y, XR, Af)
    A('s_barrier')
    for F in range(5): A(f'ds_read_b128 {v(Bf[0]+4*F,4)}, v5 offset:{1024*F}')
    for F in range(5):
        A(f's_waitcnt lgkmcnt({4-F})')
        for i in (0, 2): A(f'v_pk_add_f32 {v(Y+4*F+i,2)}, {v(Y+4*F+i,2)}, {v(Bf[0]+4*F+i,2)}')
    for j in range(10): A(f'v_cvt_pk_bf16_f32 v{HRES+j}, v{Y+2*j}, v{Y+2*j+1}')
    A(f'buffer_store_dwordx4 {v(HRES,4)}, v{vA}, {sr(SW)}, s76 offen {SC1}')
    A(f'buffer_store_dwordx4 {v(HRES+4,4)}, v{vA}, {sr(SW)}, s76 offen offset:2048 {SC1}')
    A(f'buffer_store_dwordx2 {v(HRES+8,2)}, v{vR}, {sr(SW)}, s76 offen {SC1}')
    s1, s2, on = Af, Af+1, Af+2
    A(f'v_mov_b32 v{on}, {ONES:#x}')
    A(f'v_dot2_f32_bf16 v{s2}, v{HRES}, v{HRES}, 0')
    A(f'v_dot2_f32_bf16 v{s1}, v{HRES}, v{on}, 0')
    for j in range(1, 10):
        A(f'v_dot2_f32_bf16 v{s2}, v{HRES+j}, v{HRES+j}, v{s2}')
        A(f'v_dot2_f32_bf16 v{s1}, v{HRES+j}, v{on}, v{s1}')
    A('s_lshl_b32 s34, s34, 3')
    A('s_add_u32 s34, s34, s71')
    A('s_lshl_b32 s34, s34, 8')
    A(f'v_permlane32_swap_b32 v{s1}, v{s2}')
    A(f'v_add_f32 v{s1}, v{s1}, v{s2}')
    A(f'v_mov_b32 v{s2}, v{s1}')
    A('s_lshl_b32 s37, s35, 6')
    A('s_add_u32 s34, s34, s37')
    A(f'v_permlane16_swap_b32 v{s1}, v{s2}')
    A(f'v_add_f32 v{s1}, v{s1}, v{s2}')
    A(f's_add_u32 s34, s34, {WS_ST}')
    A(f'v_lshrrev_b32 v5, 5, v{VL}')
    A('v_lshlrev_b32 v5, 7, v5')
    A('v_lshl_add_u32 v5, v3, 2, v5')
    A(f'buffer_store_dword v{s1}, v5, {sr(SW)}, s34 offen {SC1}')
    stamp(A, 3, 2, 5)

def ph_gu(A):
    NS, STG, NST = GNS, GSTG, GNST
    KAH = int(OPT.get('gk', 3))
    R = Alloc(V0, 256)
    aA, aB, bA, bB = R(), R(), R(), R()
    X = [[R(4, 4) for _ in range(2)] for _ in range(2)]
    W = [[R(4, 4) for _ in range(3)] for _ in range(2)]
    acc = [[R(16, 4) for _ in range(3)] for _ in range(2)]
    EX = [R(2) for _ in range(2)]; EW = [R(2) for _ in range(3)]
    tb = [R(4, 4), R(4, 4)]; nr = [R(2), R(2)]; cv = [R(2), R(2)]
    T = R(32, 4)
    maps_gu(A, 30, 31)
    A('s_and_b32 s32, s3, 1')
    A('s_lshr_b32 s33, s3, 1')
    A('s_lshl_b32 s34, s32, 12')
    A('s_add_u32 s34, s34, 12288')
    A(f'v_add_u32 v{bA}, s34, v{VL16}')
    A('s_mul_i32 s34, s33, 3072')
    A(f'v_add_u32 v{bB}, s34, v{VL16}')
    A(f'v_mov_b32 v{aA}, v{bA}'); A(f'v_mov_b32 v{aB}, v{bB}')
    for i in range(96): A(f'v_mov_b32 v{acc[0][0]+i}, 0')
    A('s_lshl_b32 s35, s30, 2')
    A('s_lshl_b32 s36, s32, 1')
    A('s_add_u32 s35, s35, s36')
    A('s_mul_i32 s36, s31, 6')
    A('s_mul_i32 s37, s33, 3')
    A('s_add_u32 s36, s36, s37')
    A('s_mul_i32 s38, s35, 98304')
    A('s_lshl_b32 s39, s36, 10')
    A('s_add_u32 s38, s38, s39')
    A(f's_add_u32 s50, s38, {WS_ACT}')
    A('s_add_u32 s51, s50, 98304')
    def reads(buf, s_):
        r = []
        for tt in range(2): r.append(f'ds_read_b128 {v(X[buf][tt],4)}, v{aA} offset:{2048*tt + 1024*s_}')
        for m in range(3): r.append(f'ds_read_b128 {v(W[buf][m],4)}, v{aB} offset:{6144*s_ + 1024*m}')
        return r
    def mfmas(buf):
        return [f'v_mfma_f32_32x32x16_bf16 {v(acc[tt][m],16)}, {v(W[buf][m],4)}, {v(X[buf][tt],4)}, {v(acc[tt][m],16)}' for m in range(3) for tt in range(2)]
    A('s_mov_b32 s37, 0')
    A(f's_mov_b32 s48, {NST}')
    A('s_lshr_b32 s21, s70, 1')
    A(f's_add_u32 s21, s21, {L_H3}')
    A(f's_add_u32 s22, s30, {L_H3}')
    A('s_waitcnt vmcnt(0)')
    stamp(A, 3, 3, T)
    A('s_barrier')
    signal_wait(A, 0, 21, 1, 1, 22, 1, 16, 5)
    stamp(A, 4, 0, T)
    A('s_barrier')
    stamp(A, 4, 1, T)
    for x in reads(0, 0): A(x)
    A('gu_loop:')
    A('s_waitcnt lgkmcnt(0)')
    for x in interleave(mfmas(0), reads(1, 1) + [f's_add_u32 s37, s37, {STG}', f's_cmp_eq_u32 s37, {NS*STG}', 's_cselect_b32 s37, 0, s37']): A(x)
    A('s_waitcnt lgkmcnt(0)')
    A('s_barrier')
    for x in interleave(mfmas(1), [f'v_add_u32 v{aA}, s37, v{bA}', f'v_add_u32 v{aB}, s37, v{bB}'] + reads(0, 0) + ['s_sub_u32 s48, s48, 1', 's_cmp_lg_u32 s48, 0']): A(x)
    A('s_cbranch_scc1 gu_loop')
    stamp(A, 4, 2, T)
    A(f'v_and_b32 v3, 31, v{VL}')
    A('s_lshl_b32 s34, s32, 10')
    A(f's_add_u32 s34, s34, {GTAB}')
    A('v_lshl_add_u32 v5, v3, 4, s34')
    for tt in range(2): A(f'ds_read_b128 {v(tb[tt],4)}, v5 offset:{512*tt}')
    A('s_mul_i32 s34, s33, 384')
    A(f's_add_u32 s34, s34, {GTAB+2048}')
    A('v_lshl_add_u32 v5, v3, 2, s34')
    for m in range(3): A(f'ds_read_b32 v{T+m}, v5 offset:{128*m}')
    A('s_waitcnt lgkmcnt(0)')
    A('s_barrier')
    for tt in range(2):
        ext_tok(A, tb[tt], EX[tt], T+4, T+5, M32)
        for i in range(2):
            A(f'v_mov_b32 v{nr[tt]+i}, v{tb[tt]+1}')
            A(f'v_mov_b32 v{cv[tt]+i}, v{tb[tt]+2}')
    for m in range(3): ext_feat(A, T+m, EW[m], T+4, T+5)
    A('s_nop 1')
    for m in range(3):
        for tt in range(2):
            A(f'v_mfma_f32_32x32x8bf16_1k {v(acc[tt][m],16)}, {v(EW[m],2)}, {v(EX[tt],2)}, {v(acc[tt][m],16)}')
    A('s_nop 6')
    k = 0
    for m in range(3):
        for tt in range(2):
            g = acc[tt][m]; u = g + 8
            z = T + 8*(k & 1); d = T + 16 + 4*(k & 3); k += 1
            for i in range(0, 8, 2): A(f'v_pk_mul_f32 {v(z+i,2)}, {v(g+i,2)}, {v(nr[tt],2)}')
            for i in range(8): A(f'v_exp_f32 v{z+i}, v{z+i}')
            for i in range(0, 8, 2): A(f'v_pk_mul_f32 {v(g+i,2)}, {v(g+i,2)}, {v(u+i,2)}')
            for i in range(0, 8, 2): A(f'v_pk_fma_f32 {v(z+i,2)}, {v(z+i,2)}, {v(cv[tt],2)}, {v(cv[tt],2)}')
            for i in range(8): A(f'v_rcp_f32 v{z+i}, v{z+i}')
            A('s_nop 0')
            for i in range(0, 8, 2): A(f'v_pk_mul_f32 {v(g+i,2)}, {v(g+i,2)}, {v(z+i,2)}')
            for j in range(4): A(f'v_cvt_pk_bf16_f32 v{d+j}, v{g+2*j}, v{g+2*j+1}')
            A(f'buffer_store_dwordx4 {v(d,4)}, v{VL16}, {sr(SW)}, s{50+tt} offen offset:{1024*m} {SC1}')
    stamp(A, 4, 3, T)
    A('s_branch L_down')
    A('gu_loader:')
    vm = VM(A)
    maps_gu(A, 30, 31)
    A('s_sub_u32 s32, s3, 4')
    A('s_lshl_b32 s33, s30, 2')
    A('s_add_u32 s33, s33, s32')
    A('s_mul_i32 s40, s33, 40960')
    A(f's_add_u32 s40, s40, {WS_H}')
    A('s_mul_i32 s34, s31, 245760')
    A('s_mul_i32 s35, s32, 3072')
    A('s_add_u32 s34, s34, s35')
    A(f's_add_u32 s34, s34, {WS_WGU}')
    A('s_lshl_b32 s36, s32, 11')
    A('s_add_u32 s36, s36, 12288')
    def issueB(st):
        A(f's_add_u32 s38, s35, {(st % NS)*STG}')
        A('s_mov_b32 m0, s38')
        A(f's_add_u32 s39, s34, {st*12288}')
        for j in range(3): vm(f'buffer_load_dwordx4 v{VL16}, {sr(SW)}, s39 offen offset:{1024*j} {SC1} lds', f'b{st}')
    def issueA(st):
        A(f's_add_u32 s38, s36, {(st % NS)*STG}')
        A('s_mov_b32 m0, s38')
        A(f's_add_u32 s39, s40, {st*2048}')
        for j in range(2): vm(f'buffer_load_dwordx4 v{VL16}, {sr(SW)}, s39 offen offset:{1024*j} {SC1} lds', f'a{st}')
    P0 = 32
    A('s_min_u32 s41, s32, 2')
    A('s_lshl_b32 s41, s41, 8')
    A('s_mul_i32 s42, s31, 768')
    A('s_add_u32 s42, s42, s41')
    A(f's_add_u32 s42, s42, {WS_CS}')
    A(f'v_lshlrev_b32 v3, 2, v{VL}')
    for kq in range(5):
        vm(f'buffer_load_dword v{P0+8+kq}, v3, {sr(SW)}, s42 offen sc1', 'cs')
        A('s_add_u32 s42, s42, 12288')
    for st in (0, 1, 3): issueB(st)
    A('s_barrier')
    for st in (2, 4, 5, 6): issueB(st)
    A('s_lshl_b32 s42, s33, 11')
    A(f's_add_u32 s42, s42, {WS_ST}')
    A('s_barrier')
    issueA(0)
    nxt = 1
    while nxt < KAH: issueA(nxt); nxt += 1
    for f in range(8): vm(f'buffer_load_dword v{P0+f}, v3, {sr(SW)}, s42 offen offset:{256*f} sc1', 'st')
    A('s_mul_i32 s44, s71, 48')
    A('s_mul_i32 s45, s32, 12')
    A('s_add_u32 s44, s44, s45')
    A('s_add_u32 s44, s44, 4')
    A('s_mul_i32 s44, s44, 5120')
    A(f's_add_u32 s44, s44, {WS_WD}')
    A('s_mul_i32 s45, s32, 5120')
    def issueD(ls):
        A(f's_add_u32 s38, s45, {ls*STG}')
        A('s_mov_b32 m0, s38')
        A(f's_add_u32 s39, s44, {ls*5120}')
        for j in range(4): vm(f'buffer_load_dwordx4 v{VL16}, {sr(SW)}, s39 offen offset:{1024*j} {SC1} lds', 'd')
        A('s_add_u32 s38, s38, 4096')
        A('s_mov_b32 m0, s38')
        A('s_add_u32 s39, s39, 4096')
        vm(f'buffer_load_dwordx4 v{VL16}, {sr(SW)}, s39 offen {SC1} lds', 'd')
    for st in range(NST):
        vm.wait(f'a{st}')
        A('s_barrier')
        lim = min(NST, st - 1 + NS + 1) if st >= 1 else NS
        want = min(lim, st + 1 + KAH + st)
        cnt = 0
        while nxt < want and cnt < 2:
            if nxt >= NS: issueB(nxt)
            issueA(nxt); nxt += 1; cnt += 1
        if st == 3:
            vm.wait('st')
            for f in range(1, 8): A(f'v_add_f32 v{P0}, v{P0}, v{P0+f}')
            for kq in range(1, 5): A(f'v_add_f32 v{P0+8}, v{P0+8}, v{P0+8+kq}')
            A(f'v_mov_b32 v{P0+1}, v{P0}')
            A('s_nop 1')
            A(f'v_permlane32_swap_b32 v{P0}, v{P0+1}')
            mean, nr_, cv_ = P0+4, P0+5, P0+6
            A(f'v_mul_f32 v{mean}, {f2u(1/640):#x}, v{P0}')
            A(f'v_mul_f32 v{P0+2}, v{mean}, v{mean}')
            A(f'v_mul_f32 v{cv_}, {f2u(1/640):#x}, v{P0+1}')
            A(f'v_sub_f32 v{cv_}, v{cv_}, v{P0+2}')
            A(f'v_max_f32 v{cv_}, 0, v{cv_}')
            A(f'v_add_f32 v{cv_}, {f2u(1e-5):#x}, v{cv_}')
            A(f'v_rsq_f32 v{nr_}, v{cv_}')
            A(f'v_and_b32 v4, 31, v{VL}')
            A(f'v_mul_f32 v{nr_}, {f2u(-math.log2(math.e)):#x}, v{nr_}')
            A('s_lshl_b32 s42, s32, 9')
            A(f's_add_u32 s42, s42, {GTAB}')
            A('v_lshl_add_u32 v5, v4, 4, s42')
            A(f'ds_write_b128 v5, {v(mean,4)}')
            A(f's_add_u32 s42, s41, {GTAB+2048}')
            A('v_add_u32 v5, s42, v3')
            A(f'ds_write_b32 v5, v{P0+8}')
            A('s_waitcnt lgkmcnt(0)')
        if st >= NST - NS + 1: issueD((st - 1) % NS)
    assert nxt == NST
    A('s_barrier')
    issueD((NST - 1) % NS)
    A('s_barrier')
    issueD(7)

def ph_down(A):
    R = Alloc(V0, 256)
    vA, vW2, vB0, vB1, vB2 = R(), R(), R(), R(), R()
    Bf = [R(20, 4) for _ in range(4)]
    Af = R(96, 4)
    acc = [R(20, 4) for _ in range(2)]
    A('L_down:')
    A('s_and_b32 s32, s3, 1')
    A('s_lshr_b32 s33, s3, 2')
    A('s_lshl_b32 s33, s33, 1')
    A('s_add_u32 s33, s33, s32')
    A('s_bfe_u32 s34, s3, 0x10001')
    A('s_mul_i32 s40, s71, 48')
    A('s_mul_i32 s41, s33, 12')
    A('s_add_u32 s40, s40, s41')
    A('s_mul_i32 s40, s40, 5120')
    A(f's_add_u32 s40, s40, {WS_WD}')
    A(f'v_add_u32 v{vW2}, 4096, v{VL16}')
    def bloads():
        for j in range(4):
            for F in range(5):
                A(f'buffer_load_dwordx4 {v(Bf[j]+4*F,4)}, v{VL16 if F < 4 else vW2}, {sr(SW)}, s40 offen offset:{1024*(F&3)} {SC1}')
            A('s_add_u32 s40, s40, 5120')
    L = A.label('dn')
    A('s_cmp_eq_u32 s3, 0')
    A(f's_cbranch_scc1 {L}')
    bloads()
    A(f'{L}:')
    A('s_lshl_b32 s42, s70, 1')
    A('s_add_u32 s42, s42, s34')
    A('s_mul_i32 s42, s42, 98304')
    A('s_lshl_b32 s41, s41, 11')
    A('s_add_u32 s42, s42, s41')
    A(f's_add_u32 s42, s42, {WS_ACT}')
    A(f'v_and_b32 v3, 15, v{VL}')
    A(f'v_lshrrev_b32 v4, 4, v{VL}')
    A('v_lshlrev_b32 v5, 9, v4')
    A(f'v_lshl_add_u32 v{vA}, v3, 4, v5')
    A('s_mul_i32 s43, s33, 5120')
    A(f'v_add_u32 v{vB0}, s43, v{VL16}')
    A(f'v_add_u32 v{vB1}, {3*GSTG}, v{vB0}')
    A(f'v_add_u32 v{vB2}, {6*GSTG}, v{vB0}')
    load_ptr_srd(A, SA, 56, 2048*640*2)
    L, L2 = A.label('dn'), A.label('dn')
    A('s_cmp_eq_u32 s3, 0')
    A(f's_cbranch_scc1 {L}')
    A('s_waitcnt vmcnt(20)')
    A(f's_branch {L2}')
    A(f'{L}:')
    A('s_waitcnt vmcnt(0)')
    A(f'{L2}:')
    stamp(A, 4, 4, 5)
    A('s_barrier')
    A(f's_add_u32 s21, s30, {L_H4}')
    A('s_lshr_b32 s22, s70, 1')
    A(f's_add_u32 s22, s22, {L_H4}')
    signal_wait(A, 0, 21, 1, 1, 22, 1, 16, 5)
    stamp(A, 5, 0, 5)
    L = A.label('dn')
    A('s_cmp_lg_u32 s3, 0')
    A(f's_cbranch_scc1 {L}')
    bloads()
    A(f'{L}:')
    for j in range(12):
        if j and j % 2 == 0: A('s_add_u32 s42, s42, 4096')
        for tk in range(2):
            A(f'buffer_load_dwordx4 {v(Af+8*j+4*tk,4)}, v{vA}, {sr(SW)}, s42 offen offset:{2048*(j&1) + 256*tk} {SC1}')
    def breads(j):
        ls = j - 4
        base, o = ((vB0, vB1, vB2)[ls // 3], (ls % 3) * GSTG)
        return [f'ds_read_b128 {v(Bf[j%4]+4*F,4)}, v{base} offset:{o + 1024*F}' for F in range(5)]
    for j in range(12):
        lg = '' if j < 4 else f'lgkmcnt({min(10, 5*(11-j))})'
        A(f's_waitcnt vmcnt({22-2*j}) {lg}')
        ms = [f'v_mfma_f32_16x16x32_bf16 {v(acc[tk]+4*F,4)}, {v(Bf[j%4]+4*F,4)}, {v(Af+8*j+4*tk,4)}, ' + ('0' if j == 0 else v(acc[tk]+4*F,4)) for F in range(5) for tk in range(2)]
        for x in interleave(ms, breads(j+3) if 1 <= j <= 8 else []): A(x)
    stamp(A, 5, 1, 5)
    A('s_barrier')
    A('s_nop 1')
    A('s_cmp_ge_u32 s3, 4')
    A('s_cbranch_scc1 dn_far')
    A('s_xor_b32 s35, s3, 1')
    A('s_mul_i32 s35, s35, 15360')
    A(f'v_add_u32 v5, s35, v{VL16}')
    A('s_cmp_eq_u32 s32, 0')
    A('s_cbranch_scc1 dn_k0')
    for F in range(5): A(f'ds_write_b128 v5, {v(acc[0]+4*F,4)} offset:{1024*F}')
    A('s_waitcnt lgkmcnt(0)')
    for i in range(20): A(f'v_mov_b32 v{acc[0]+i}, v{acc[1]+i}')
    A('s_branch dn_k1')
    A('dn_k0:')
    for F in range(5): A(f'ds_write_b128 v5, {v(acc[1]+4*F,4)} offset:{1024*F}')
    A('dn_k1:')
    Y = acc[0]
    finalize(A, Y, HRES, Af)
    A('s_mul_i32 s35, s3, 15360')
    A(f'v_add_u32 v5, s35, v{VL16}')
    A('v_mul_u32_u24 v6, 1280, v3')
    A('v_lshl_add_u32 v7, v4, 3, v6')
    A('v_lshl_add_u32 v6, v4, 4, v6')
    A('s_waitcnt lgkmcnt(0)')
    A('s_barrier')
    for k in range(3):
        for F in range(5): A(f'ds_read_b128 {v(Bf[k]+4*F,4)}, v5 offset:{5120*k+1024*F}')
    for k in range(3):
        A(f's_waitcnt lgkmcnt({10-5*k})')
        for i in range(0, 20, 2): A(f'v_pk_add_f32 {v(Y+i,2)}, {v(Y+i,2)}, {v(Bf[k]+i,2)}')
    for j in range(10): A(f'v_cvt_pk_bf16_f32 v{HRES+j}, v{Y+2*j}, v{Y+2*j+1}')
    A(f'buffer_store_dwordx4 {v(HRES,4)}, v6, {sr(SA)}, s74 offen')
    A(f'buffer_store_dwordx4 {v(HRES+4,4)}, v6, {sr(SA)}, s74 offen offset:64')
    A(f'buffer_store_dwordx2 {v(HRES+8,2)}, v7, {sr(SA)}, s74 offen offset:128')
    stamp(A, 5, 3, 5)
    A('s_endpgm')
    A('dn_far:')
    A('s_lshl_b32 s35, s34, 1')
    A('s_mul_i32 s35, s35, 15360')
    A('s_sub_u32 s36, s33, 1')
    A('s_mul_i32 s36, s36, 5120')
    A('s_add_u32 s35, s35, s36')
    A(f'v_add_u32 v5, s35, v{VL16}')
    for tk in range(2):
        for F in range(5): A(f'ds_write_b128 v5, {v(acc[tk]+4*F,4)} offset:{15360*tk + 1024*F}')
    A('s_waitcnt lgkmcnt(0)')
    A('s_barrier')
    A('L_done:')
    A('s_endpgm')

def main():
    A = Asm()
    A(kernel_header(NAME + '_kernel'))
    ph_start(A)
    ph_qkv(A)
    XR, slow = ph_att(A)
    ph_wo(A, XR)
    ph_gu(A)
    ph_down(A)
    slow(A)
    A('L_end:')
    hdr = open('cdna_kernels/' + NAME + '.s.ref').read().split('; Override launch')[0]
    out = hdr + f'; @launch grid=(256,1,1) block=(512,1,1) lds={LDS_TOTAL}\n'
    out += '.amdgcn_target "amdgcn-amd-amdhsa--gfx950"\n' + A.text() + kernel_desc(NAME + '_kernel', 256)
    dst = [x for x in sys.argv[1:] if not x.startswith('--')]
    open(dst[0] if dst else 'out2.s', 'w').write(out)

if __name__ == '__main__':
    main()
```

```python
import sys, math, struct
from dsl import *
import gen1
from gen1 import f2u, QSCALE, ONES, div_magic, ln_stats, ext_tok, ext_feat

NAME = 'sequential_preLN__softmax_full_mha__swiglu_ffn__prompt'
OPT = dict((x[2:].split('=') + ['1'])[:2] for x in sys.argv if x.startswith('--'))
PROF = 'prof' in OPT

WS_Q, WS_KV, WS_O, WS_H, WS_ACT = gen1.WS_Q, gen1.WS_KV, gen1.WS_O, gen1.WS_H, gen1.WS_ACT
WS_WO, WS_WGU, WS_WD, WS_CS, WS_ST = gen1.WS_WO, gen1.WS_WGU, gen1.WS_WD, gen1.WS_CS, gen1.WS_ST
WS_RS  = 0x1920000
WS_CQ  = 0x1950000
WS_CNT = 0x1980000
WS_PROF = gen1.WS_PROF
WS_SIZE = gen1.WS_SIZE
check = gen1.check
L_H1, L_P, L_SROW, L_SCOL, L_H2, L_H3, L_H4 = 0, 64, 72, 88, 104, 112, 128

SW, SA, SB, SC = 4, 8, 12, 16
M32, MD20 = 90, 92
VL, VL16 = 1, 2
HRES = 8
V0 = 18
SC1 = 'sc1'
LDS_TOTAL = 163840
SPINMAX = 1 << 20

def sr(n): return f's[{n}:{n+3}]'

class VM:
    def __init__(self, A): self.A = A; self.q = []
    def __call__(self, text, tag=None):
        self.A(text); self.q.append(tag)
    def skip(self, tag=None): self.q.append(tag)
    def count_after(self, tag):
        idx = max(i for i, t in enumerate(self.q) if t == tag)
        return len(self.q) - 1 - idx
    def wait(self, tag, extra='', slack=0):
        if tag not in self.q:
            if extra: self.A(f's_waitcnt {extra}')
            return
        n = self.count_after(tag) - slack
        assert 0 <= n <= 63, n
        self.A(f's_waitcnt vmcnt({n}) {extra}')
    def wait_all(self, extra=''):
        self.A(f's_waitcnt vmcnt(0) {extra}'); self.q = []

DBGPTS = [(1,1),(1,2),(1,4),(2,0),(2,1),(2,2),(2,4),(3,0),(3,3),(4,0),(4,2),(4,4),(5,0),(5,1),(5,3)]
def stamp(A, kid, pt, vt, wave=0, vm=None):
    if 'dbg' in OPT:
        if (kid, pt) == (1, 0):
            A('s_memrealtime s[86:87]')
            A('s_waitcnt lgkmcnt(0)')
            return
        if (kid, pt) not in DBGPTS: return
        L = A.label('st')
        A(f's_cmp_lg_u32 s3, {wave}')
        A(f's_cbranch_scc1 {L}')
        A(f's_cmp_lg_u32 s2, {OPT["dbg"]}')
        A(f's_cbranch_scc1 {L}')
        A('s_memrealtime s[96:97]')
        A('s_waitcnt lgkmcnt(0)')
        A('s_sub_u32 s96, s96, s86')
        A(f'v_mov_b32 v{vt}, s96')
        A(f'v_mov_b32 v{vt+1}, 0')
        A(f'buffer_store_dword v{vt}, v{vt+1}, {sr(SC)}, 0 offen offset:{4 + 4*DBGPTS.index((kid, pt))}')
        A(f'{L}:')
        return
    if not PROF: return
    L = A.label('st')
    A(f's_cmp_lg_u32 s3, {wave}')
    A(f's_cbranch_scc1 {L}')
    A('s_memrealtime s[96:97]')
    A('s_memtime s[94:95]')
    A('s_lshl_b32 s98, s2, 2')
    A(f's_add_u32 s98, s98, {WS_PROF + (kid*8+pt)*1024}')
    A('s_add_u32 s99, s98, 65536')
    A('s_waitcnt lgkmcnt(0)')
    A(f'v_mov_b32 v{vt}, s96')
    A(f'v_mov_b32 v{vt+1}, 0')
    A(f'buffer_store_dword v{vt}, v{vt+1}, {sr(SW)}, s98 offen')
    A(f'v_mov_b32 v{vt}, s94')
    A(f'buffer_store_dword v{vt}, v{vt+1}, {sr(SW)}, s99 offen')
    A(f'{L}:')

def load_ptr_srd(A, dst, off, nbytes):
    A(f's_load_dwordx2 s[{dst}:{dst+1}], s[0:1], {off}')
    A('s_waitcnt lgkmcnt(0)')
    srd(A, dst, dst, nbytes)

def spin(A, vaddr, vdata, target, nl_mask, first_issued=False, soff='0'):
    L, Lq = A.label('spin'), A.label('spun')
    A(f's_mov_b64 exec, {nl_mask}')
    if first_issued:
        A(f'v_cmp_ne_u32 vcc, {target}, v{vdata}')
        A('s_nop 4')
        A(f's_cbranch_vccz {Lq}')
    A(f's_mov_b32 s88, {SPINMAX}')
    A(f'{L}:')
    A(f'buffer_load_dword v{vdata}, v{vaddr}, {sr(SW)}, {soff} offen sc1')
    A('s_waitcnt vmcnt(0)')
    A(f'v_cmp_ne_u32 vcc, {target}, v{vdata}')
    A('s_sub_u32 s88, s88, 1')
    A(f's_cbranch_scc1 {Lq}')
    A('s_nop 2')
    A(f's_cbranch_vccnz {L}')
    A(f'{Lq}:')
    A('s_mov_b64 exec, -1')

def signal_wait(A, wave, sig_line_s, nsig_stride, nsig, poll_line_s, npoll, target, t0, do_signal=True):
    L = A.label('sw')
    A(f's_cmp_lg_u32 s3, {wave}')
    A(f's_cbranch_scc1 {L}')
    if do_signal:
        A(f's_lshl_b32 s20, s{sig_line_s}, 7')
        A(f's_add_u32 s20, s20, {WS_CNT}')
        A(f'v_mul_u32_u24 v{t0}, {128*nsig_stride}, v{VL}')
        A(f'v_mov_b32 v{t0+1}, 1')
        A(f's_mov_b64 exec, {(1 << nsig) - 1:#x}')
        A(f'buffer_atomic_add v{t0+1}, v{t0}, {sr(SW)}, s20 offen sc1')
        A('s_mov_b64 exec, -1')
    A(f's_lshl_b32 s20, s{poll_line_s}, 7')
    A(f's_add_u32 s20, s20, {WS_CNT}')
    A(f'v_lshlrev_b32 v{t0}, 7, v{VL}')
    spin(A, t0, t0+1, target, f'{(1 << npoll) - 1:#x}', soff='s20')
    A(f'{L}:')
    A('s_barrier')

def ph_start(A):
    A('s_cmp_ge_u32 s2, 256')
    A('s_cbranch_scc1 L_done')
    A(f's_load_dwordx2 s[{SW}:{SW+1}], s[0:1], 72')
    A(f's_load_dwordx2 s[{SA}:{SA+1}], s[0:1], 0')
    A(f's_load_dwordx2 s[{SB}:{SB+1}], s[0:1], 8')
    A(f's_load_dwordx2 s[{SC}:{SC+1}], s[0:1], 64')
    A('v_lshrrev_b32 v3, 6, v0')
    A(f'v_and_b32 v{VL}, 63, v0')
    A('v_readfirstlane_b32 s3, v3')
    A(f'v_lshlrev_b32 v{VL16}, 4, v{VL}')
    A(f's_mov_b32 s{M32}, -1'); A(f's_mov_b32 s{M32+1}, 0')
    A(f's_mov_b32 s{MD20}, 0xfffff'); A(f's_mov_b32 s{MD20+1}, 0xfffff')
    A('s_waitcnt lgkmcnt(0)')
    srd(A, SW, SW, WS_SIZE)
    srd(A, SA, SA, 2048*640*2)
    srd(A, SB, SB, 640*1920*2)
    srd(A, SC, SC, 256)
    stamp(A, 1, 0, 4)
    A('s_cmp_lt_u32 s2, 240')
    A('s_cbranch_scc1 L_qkv')
    A('s_cmp_lg_u32 s3, 0')
    A('s_cbranch_scc1 L_spare_w')
    A('s_cmp_lg_u32 s2, 255')
    A('s_cbranch_scc1 L_spare_p')
    A(f'v_lshlrev_b32 v3, 7, v{VL}')
    A('v_mov_b32 v4, 0')
    for i in range(3):
        A(f's_mov_b32 s20, {WS_CNT + 8192*i}')
        A(f'buffer_store_dword v4, v3, {sr(SW)}, s20 offen sc1')
    A('s_waitcnt vmcnt(0)')
    A('v_mov_b32 v5, 1')
    A('s_mov_b64 exec, 1')
    A(f'buffer_store_dword v5, v4, {sr(SC)}, 0 offen sc1')
    A('s_mov_b64 exec, -1')
    A('L_spare_p:')
    wait_ready(A, 4, 5)
    A('L_spare_w:')
    if 'nowarm' not in OPT:
        A('s_getpc_b64 s[20:21]')
        A('L_pc:')
        A(f's_sub_u32 s20, s20, L_pc - {NAME}_kernel')
        A('s_subb_u32 s21, s21, 0')
        A('v_lshlrev_b32 v3, 7, v0')
        A(f'v_cmp_gt_u32 vcc, L_end - {NAME}_kernel, v3')
        A('s_and_saveexec_b64 s[22:23], vcc')
        A('s_cbranch_execz L_nowarm')
        A('global_load_dword v4, v3, s[20:21]')
        A('s_waitcnt vmcnt(0)')
        A('L_nowarm:')
        A('s_mov_b64 exec, -1')
    A('s_branch L_h1_spare')

def wait_ready(A, t0, t1, first_issued=False):
    L, Lq = A.label('rdy'), A.label('rdyq')
    A('s_mov_b64 exec, 1')
    if first_issued:
        A(f'v_cmp_ne_u32 vcc, 1, v{t1}')
        A('s_nop 4')
        A(f's_cbranch_vccz {Lq}')
    A(f'v_mov_b32 v{t0}, 0')
    A(f's_mov_b32 s88, {SPINMAX}')
    A(f'{L}:')
    A(f'buffer_load_dword v{t1}, v{t0}, {sr(SC)}, 0 offen sc1')
    A('s_waitcnt vmcnt(0)')
    A(f'v_cmp_ne_u32 vcc, 1, v{t1}')
    A('s_sub_u32 s88, s88, 1')
    A(f's_cbranch_scc1 {Lq}')
    A('s_nop 2')
    A(f's_cbranch_vccnz {L}')
    A(f'{Lq}:')
    A('s_mov_b64 exec, -1')

def ph_qkv(A):
    SX, SWT = SA, SB
    NS = 4; STG = 32768; NST = 10
    LST = NS * STG
    KAH = int(OPT.get('qk', 2))
    A('L_qkv:')
    A('s_and_b32 s20, s2, 7')
    A('s_lshr_b32 s21, s2, 3')
    A('s_lshr_b32 s22, s20, 1')
    A('s_and_b32 s23, s20, 1')
    A('s_lshl_b32 s30, s22, 2')
    A('s_lshr_b32 s31, s21, 2')
    A('s_lshl_b32 s24, s23, 3')
    A('s_add_u32 s31, s31, s24')
    A('s_and_b32 s24, s21, 3')
    A('s_lshl_b32 s25, s23, 1')
    A('s_add_u32 s25, s25, s24')
    A('s_cmp_ge_u32 s21, 28')
    A('s_cselect_b32 s31, 7, s31')
    A('s_cselect_b32 s24, s25, s24')
    A('s_add_u32 s30, s30, s24')
    A('s_add_u32 s29, s30, s31')
    for _ in range(2):
        A('s_sub_u32 s24, s29, 10')
        A('s_cmp_ge_u32 s29, 10')
        A('s_cselect_b32 s29, s24, s29')
    A('s_cmp_lt_u32 s3, 4')
    A('s_cbranch_scc1 qkv_compute')
    vm = VM(A)
    vA_, vB_ = 20, 24
    A('s_sub_u32 s32, s3, 4')
    A('s_lshl_b32 s33, s30, 7')
    A('s_lshl_b32 s34, s32, 5')
    A('s_add_u32 s33, s33, s34')
    A(f'v_lshrrev_b32 v3, 3, v{VL}')
    A(f'v_lshrrev_b32 v4, 4, v{VL}')
    A(f'v_and_b32 v5, 7, v{VL}')
    for j in range(4):
        A(f'v_add_u32 v6, {8*j}, v3')
        A('v_add_u32 v6, s33, v6')
        A('v_mul_u32_u24 v6, 1280, v6')
        A(f'v_add_u32 v7, {(4*j)&7}, v4')
        A('v_xor_b32 v7, v5, v7')
        A(f'v_lshl_add_u32 v{vA_+j}, v7, 4, v6')
        if j: A(f'v_subrev_u32 v{vA_+j}, {1024*j}, v{vA_+j}')
    A('s_lshl_b32 s34, s32, 4')
    A('s_lshl_b32 s35, s31, 8')
    A(f'v_and_b32 v5, 15, v{VL}')
    A('v_lshlrev_b32 v7, 2, v4')
    A('v_xor_b32 v5, v5, v7')
    A('v_lshlrev_b32 v5, 4, v5')
    A('v_add_u32 v5, s35, v5')
    for j in range(4):
        A(f'v_add_u32 v6, {4*j}, v4')
        A('v_add_u32 v6, s34, v6')
        A('v_mul_u32_u24 v6, 3840, v6')
        A(f'v_add_u32 v{vB_+j}, v5, v6')
        if j: A(f'v_subrev_u32 v{vB_+j}, {1024*j}, v{vB_+j}')
    A('s_lshl_b32 s36, s32, 12')
    A('s_lshl_b32 s37, s29, 7')
    A(f's_mul_i32 s38, s29, {64*3840}')
    def issue(st):
        slot = st % NS
        A(f's_add_u32 s39, s36, {slot*STG}')
        A('s_mov_b32 m0, s39')
        A(f's_add_u32 s39, s36, {slot*STG+16384}')
        for j in range(4):
            vm(f'buffer_load_dwordx4 v{vA_+j}, {sr(SX)}, s37 offen offset:{1024*j} lds', f'st{st}')
        A('s_mov_b32 m0, s39')
        A('s_add_u32 s37, s37, 128')
        for j in range(4):
            vm(f'buffer_load_dwordx4 v{vB_+j}, {sr(SWT)}, s38 offen offset:{1024*j} lds', f'st{st}')
        A(f's_add_u32 s38, s38, {64*3840}')
        A('s_cmp_eq_u32 s37, 1280')
        A('s_cselect_b32 s37, 0, s37')
        A('s_cselect_b32 s38, 0, s38')
    P0 = 32
    vPoll, vPa, vOne = 28, 29, 30
    A(f's_add_u32 s40, s30, {L_SROW}')
    A(f's_add_u32 s41, s31, {L_SCOL}')
    A('s_sub_u32 s41, s41, s40')
    A(f'v_mul_lo_u32 v{vPa}, v{VL}, s41')
    A(f'v_add_u32 v{vPa}, s40, v{vPa}')
    A(f'v_lshlrev_b32 v{vPa}, 7, v{vPa}')
    A(f'v_add_u32 v{vPa}, {WS_CNT}, v{vPa}')
    A(f'v_mov_b32 v{vOne}, 1')
    A('s_cmp_lt_u32 s31, 10')
    A('s_cselect_b32 s42, 1, 0')
    A('s_cmp_lt_u32 s30, 10')
    A('s_cselect_b32 s43, 2, 0')
    A('s_or_b32 s42, s42, s43')
    A('s_cmp_eq_u32 s32, 0')
    A('s_cselect_b32 s42, s42, 0')
    A('s_mov_b32 s43, 0')
    nxt = 0
    for _ in range(KAH): issue(nxt); nxt += 1
    for st in range(NST):
        vm.wait(f'st{st}')
        if st == 7:
            spin(A, vPa, vPoll, 10, '3', first_issued=True)
            A('s_mul_i32 s44, s30, 10240')
            A('s_lshl_b32 s45, s32, 8')
            A('s_add_u32 s44, s44, s45')
            A(f's_add_u32 s44, s44, {WS_RS}')
            A('s_mul_i32 s45, s31, 5120')
            A('s_lshl_b32 s46, s32, 7')
            A('s_add_u32 s45, s45, s46')
            A(f's_add_u32 s45, s45, {WS_CQ}')
            A(f'v_lshlrev_b32 v3, 2, v{VL}')
            A(f'v_and_b32 v4, 31, v{VL}')
            A('v_lshlrev_b32 v4, 2, v4')
            for c in range(10):
                if c in (4, 8): A('s_add_u32 s44, s44, 4096')
                vm(f'buffer_load_dword v{P0+c}, v3, {sr(SW)}, s44 offen offset:{1024*(c&3)} sc1', 'part')
            for c in range(10):
                if c == 8: A('s_add_u32 s45, s45, 4096')
                vm(f'buffer_load_dword v{P0+10+c}, v4, {sr(SW)}, s45 offen offset:{512*(c&7)} sc1', 'part')
        A('s_barrier')
        lim = min(NST, st + NS) if st >= 1 else min(NST, NS)
        want = min(lim, st + 1 + KAH)
        if st == 3:
            L = A.label('nosig')
            A('s_cmp_eq_u32 s42, 0')
            A(f's_cbranch_scc1 {L}')
            A('s_mov_b64 exec, s[42:43]')
            A(f'buffer_atomic_add v{vOne}, v{vPa}, {sr(SW)}, 0 offen sc1')
            A('s_mov_b64 exec, -1')
            A(f'{L}:')
        while nxt < want:
            if nxt == 8:
                A('s_mov_b64 exec, 3')
                vm(f'buffer_load_dword v{vPoll}, v{vPa}, {sr(SW)}, 0 offen sc1', 'st7')
                A('s_mov_b64 exec, -1')
            issue(nxt); nxt += 1
    assert nxt == NST
    vm.wait_all()
    for c in range(1, 10):
        A(f'v_add_f32 v{P0}, v{P0}, v{P0+c}')
        A(f'v_add_f32 v{P0+10}, v{P0+10}, v{P0+10+c}')
    A(f'v_mov_b32 v{P0+1}, v{P0}')
    A('s_nop 1')
    A(f'v_permlane32_swap_b32 v{P0}, v{P0+1}')
    ln_stats(A, P0, P0+1, P0+2, P0+3, P0+4)
    A('s_lshl_b32 s44, s32, 8')
    A(f's_add_u32 s44, s44, {LST}')
    A('v_lshl_add_u32 v5, v4, 1, s44')
    A(f'ds_write_b64 v5, v[{P0+2}:{P0+3}]')
    A('s_lshl_b32 s44, s32, 7')
    A(f's_add_u32 s44, s44, {LST+1024}')
    A('v_add_u32 v5, s44, v4')
    A(f'ds_write_b32 v5, v{P0+10}')
    A('s_waitcnt lgkmcnt(0)')
    A('s_barrier')
    A('s_branch L_h1')
    A('qkv_compute:')
    R = Alloc(V0, 256)
    vA = [[R() for _ in range(4)] for _ in range(2)]
    vB = [R() for _ in range(2)]
    vSt = [R() for _ in range(8)]
    sx = R(2); sxx = sx + 1; cs, ones, vRdy = R(), R(), R()
    X = [[R(4, 4) for _ in range(2)] for _ in range(2)]
    W = [[R(4, 4) for _ in range(2)] for _ in range(2)]
    acc = [[R(16, 4) for _ in range(2)] for _ in range(2)]
    T = R(40, 4)
    A('v_mov_b32 v3, 0')
    A(f'buffer_load_dword v{vRdy}, v3, {sr(SC)}, 0 offen sc1')
    A('s_and_b32 s32, s3, 1')
    A('s_lshr_b32 s33, s3, 1')
    A(f'v_and_b32 v3, 31, v{VL}')
    A(f'v_lshrrev_b32 v4, 5, v{VL}')
    A(f'v_bfe_u32 v5, v{VL}, 1, 3')
    A('v_xor_b32 v5, v4, v5')
    A('v_lshlrev_b32 v5, 4, v5')
    A('v_lshl_add_u32 v5, v3, 7, v5')
    A('s_lshl_b32 s34, s32, 1')
    A('s_add_u32 s44, s34, s33')
    A('s_xor_b32 s45, s44, 1')
    A('s_lshl_b32 s34, s33, 1')
    A('s_add_u32 s46, s34, s32')
    A('s_xor_b32 s47, s46, 1')
    for tt in range(2):
        A(f's_lshl_b32 s34, s{44+tt}, 12')
        A(f'v_add_u32 v{vA[tt][0]}, s34, v5')
        for s_ in range(1, 4):
            A(f'v_xor_b32 v{vA[tt][s_]}, {32*s_}, v{vA[tt][0]}')
    A(f'v_bfe_u32 v5, v{VL}, 2, 2')
    A('v_lshl_add_u32 v6, v4, 3, v5')
    A('v_lshlrev_b32 v6, 8, v6')
    A(f'v_bfe_u32 v7, v{VL}, 4, 1')
    A('v_lshl_add_u32 v6, v7, 5, v6')
    A(f'v_and_b32 v7, 3, v{VL}')
    A('v_lshl_add_u32 v6, v7, 3, v6')
    A('v_add_u32 v6, 16384, v6')
    for ft in range(2):
        A(f'v_xor_b32 v7, s{46+ft}, v5')
        A(f'v_lshl_add_u32 v{vB[ft]}, v7, 6, v6')
    A(f'v_mov_b32 v{sx}, 0'); A(f'v_mov_b32 v{sxx}, 0'); A(f'v_mov_b32 v{cs}, 0')
    A(f'v_mov_b32 v{ones}, {ONES:#x}')
    for i in range(64): A(f'v_mov_b32 v{acc[0][0]+i}, 0')
    A('s_lshl_b32 s42, s30, 2')
    A('s_mul_i32 s52, s30, 10')
    A('s_add_u32 s52, s52, s29')
    A('s_lshl_b32 s52, s52, 10')
    A('s_lshl_b32 s34, s44, 8')
    A('s_add_u32 s52, s52, s34')
    A(f's_add_u32 s52, s52, {WS_RS}')
    A('s_mul_i32 s53, s31, 10')
    A('s_add_u32 s53, s53, s29')
    A('s_lshl_b32 s53, s53, 9')
    A('s_lshl_b32 s34, s46, 7')
    A('s_add_u32 s53, s53, s34')
    A(f's_add_u32 s53, s53, {WS_CQ}')
    A('s_cmp_ge_u32 s31, 10')
    A('s_cbranch_scc1 qkv_vpath')

    def reads(buf, slot, s_):
        o = (slot & 1) * STG
        r = []
        for tt in range(2):
            r.append(f'ds_read_b128 {v(X[buf][tt],4)}, v{vA[tt][s_]} offset:{o}')
        for ft in range(2):
            for jh in range(2):
                r.append(f'ds_read_b64_tr_b16 {v(W[buf][ft]+2*jh,2)}, v{vB[ft]} offset:{o + s_*4096 + jh*1024}')
        return r
    def mfmas(buf, vpath):
        r = []
        for tt in range(2):
            for ft in range(2):
                a_, b_ = (X[buf][tt], W[buf][ft]) if vpath else (W[buf][ft], X[buf][tt])
                r.append(f'v_mfma_f32_32x32x16_bf16 {v(acc[tt][ft],16)}, {v(a_,4)}, {v(b_,4)}, {v(acc[tt][ft],16)}')
        return r
    def stage(st, vpath, dots=False, pre_barrier=None):
        for s_ in range(4):
            buf = s_ & 1
            A('s_waitcnt lgkmcnt(0)')
            fill = []
            if s_ == 3:
                if pre_barrier: pre_barrier()
                A('s_barrier')
                if st == 1:
                    fill += [f'v_xor_b32 v{r_}, 0x10000, v{r_}' for r_ in [vA[0][0], vA[1][0]] + vB]
                fill += reads(buf ^ 1, st + 1, 0)
                if st == 1:
                    fill += [f'v_xor_b32 v{r_}, 0x10000, v{r_}' for r_ in vA[0][1:] + vA[1][1:]]
            else:
                fill += reads(buf ^ 1, st, s_ + 1)
            for x in interleave(mfmas(buf, vpath), fill): A(x)
            if dots:
                for j in range(4):
                    A(f'v_dot2_f32_bf16 v{sx}, v{X[buf][0]+j}, v{ones}, v{sx}')
                    A(f'v_dot2_f32_bf16 v{sxx}, v{X[buf][0]+j}, v{X[buf][0]+j}, v{sxx}')
                    A(f'v_dot2_f32_bf16 v{cs}, v{W[buf][0]+j}, v{ones}, v{cs}')
    def publish():
        A(f'v_lshlrev_b32 v5, 2, v{VL}')
        A('v_lshlrev_b32 v6, 2, v3')
        A('s_nop 0')
        A(f'v_mov_b32 v{T}, v{cs}')
        A('s_nop 1')
        A(f'v_permlane32_swap_b32 v{sx}, v{sxx}')
        A(f'v_permlane32_swap_b32 v{cs}, v{T}')
        A(f'v_add_f32 v{sx}, v{sx}, v{sxx}')
        A(f'v_add_f32 v{cs}, v{cs}, v{T}')
        L1, L2 = A.label('nor'), A.label('noc')
        A('s_cmp_ge_u32 s31, 10')
        A(f's_cbranch_scc1 {L1}')
        A(f'buffer_store_dword v{sx}, v5, {sr(SW)}, s52 offen sc1')
        A(f'{L1}:')
        A('s_cmp_ge_u32 s30, 10')
        A(f's_cbranch_scc1 {L2}')
        A(f'buffer_store_dword v{cs}, v6, {sr(SW)}, s53 offen sc1')
        A(f'{L2}:')
    def drain_pub():
        A('s_waitcnt vmcnt(0)')
        L = A.label('nr')
        A('s_cmp_lg_u32 s3, 0')
        A(f's_cbranch_scc1 {L}')
        wait_ready(A, T, vRdy, first_issued=True)
        A(f'{L}:')
    def mainloop(vpath, tag):
        A('s_barrier')
        stamp(A, 1, 1, T)
        for x in reads(0, 0, 0): A(x)
        stage(0, vpath, dots=True)
        publish()
        stage(1, vpath)
        A('s_mov_b32 s48, 4')
        A(f'qkv_loop_{tag}:')
        stage(0, vpath, pre_barrier=drain_pub)
        stage(1, vpath)
        A('s_sub_u32 s48, s48, 1')
        A('s_cmp_lg_u32 s48, 0')
        A(f's_cbranch_scc1 qkv_loop_{tag}')
        stamp(A, 1, 2, T+30)
    ms = [T+0, T+2]; csf = [T+4, T+5]
    EX = [T+8, T+10]; EW = [T+12, T+14]
    def rank1(vpath):
        A('v_lshlrev_b32 v5, 3, v3')
        A('v_lshlrev_b32 v7, 2, v3')
        for tt in range(2):
            A(f's_lshl_b32 s34, s{44+tt}, 8')
            A(f's_add_u32 s34, s34, {LST}')
            A('v_add_u32 v6, s34, v5')
            A(f'ds_read_b64 {v(ms[tt],2)}, v6')
        for ft in range(2):
            A(f's_lshl_b32 s34, s{46+ft}, 7')
            A(f's_add_u32 s34, s34, {LST+1024}')
            A('v_add_u32 v6, s34, v7')
            A(f'ds_read_b32 v{csf[ft]}, v6')
        A('s_waitcnt lgkmcnt(0)')
        for tt in range(2): ext_tok(A, ms[tt], EX[tt], T+16, T+17, M32)
        for ft in range(2): ext_feat(A, csf[ft], EW[ft], T+16, T+17)
        A('s_nop 1')
        for tt in range(2):
            for ft in range(2):
                a_, b_ = (EX[tt], EW[ft]) if vpath else (EW[ft], EX[tt])
                A(f'v_mfma_f32_32x32x8bf16_1k {v(acc[tt][ft],16)}, {v(a_,2)}, {v(b_,2)}, {v(acc[tt][ft],16)}')
    A('s_cmp_ge_u32 s31, 5')
    A('s_cselect_b32 s34, 5, 0')
    A('s_mov_b32 s35, 81920'); A('s_cmov_b32 s35, 163840')
    A('s_mov_b32 s36, 1280'); A('s_cmov_b32 s36, 2560')
    A(f's_cselect_b32 s37, {WS_KV}, {WS_Q}')
    A(f's_cselect_b32 s49, {f2u(1.0):#x}, {f2u(QSCALE):#x}')
    A('s_sub_u32 s34, s31, s34')
    A('s_lshl_b32 s34, s34, 5')
    for ft in range(2):
        A(f's_lshl_b32 s38, s{46+ft}, 3')
        A('s_add_u32 s38, s38, s34')
        for q in range(4):
            d = vSt[ft*4+q]
            A(f'v_add_u32 v5, {2*q}, v4')
            A('v_add_u32 v5, s38, v5')
            A('v_mul_u32_u24 v6, 205, v5')
            A('v_lshrrev_b32 v6, 10, v6')
            A('v_mul_u32_u24 v7, 5, v6')
            A('v_sub_u32 v5, v5, v7')
            A('v_mul_lo_u32 v6, v6, s35')
            A('v_lshl_add_u32 v6, v5, 8, v6')
            A(f'v_lshl_add_u32 v{d}, v3, 3, v6')
    for tt in range(2):
        A(f's_add_u32 s38, s42, s{44+tt}')
        A('s_mul_i32 s38, s38, s36')
        A(f's_add_u32 s{50+tt}, s38, s37')
    mainloop(False, 'qk')
    rank1(False)
    for tt in range(2):
        A(f'v_mul_f32 v{ms[tt]+1}, s49, v{ms[tt]+1}')
        A(f'v_mov_b32 v{ms[tt]}, v{ms[tt]+1}')
    A('s_nop 5')
    k = 0
    for tt in range(2):
        for ft in range(2):
            for q in range(4):
                b = acc[tt][ft] + 4*q
                for i in (0, 2): A(f'v_pk_mul_f32 {v(b+i,2)}, {v(b+i,2)}, {v(ms[tt],2)}')
                d = T + 16 + 2*(k % 8); k += 1
                A(f'v_cvt_pk_bf16_f32 v{d}, v{b}, v{b+1}')
                A(f'v_cvt_pk_bf16_f32 v{d+1}, v{b+2}, v{b+3}')
                A(f'buffer_store_dwordx2 {v(d,2)}, v{vSt[ft*4+q]}, {sr(SW)}, s{50+tt} offen {SC1}')
    A('s_branch qkv_out')
    A('qkv_vpath:')
    A('s_sub_u32 s34, s31, 10')
    A('s_lshl_b32 s34, s34, 7')
    A('s_mov_b32 s35, 163840')
    for ft in range(2):
        A(f's_lshl_b32 s38, s{46+ft}, 5')
        A('s_add_u32 s38, s38, s34')
        A('v_add_u32 v5, s38, v3')
        A('v_mul_u32_u24 v6, 3277, v5')
        A('v_lshrrev_b32 v6, 16, v6')
        A('v_mul_u32_u24 v7, 20, v6')
        A('v_sub_u32 v5, v5, v7')
        A('v_mul_lo_u32 v6, v6, s35')
        A('v_lshl_add_u32 v6, v5, 4, v6')
        A('v_mul_u32_u24 v7, 320, v4')
        A(f'v_add_u32 v{vSt[ft]}, v6, v7')
    for tt in range(2):
        A(f's_add_u32 s38, s42, s{44+tt}')
        A('s_mul_i32 s38, s38, 2560')
        A(f's_add_u32 s{50+tt}, s38, {WS_KV+1280}')
    mainloop(True, 'v')
    rank1(True)
    RS = X[0][0]
    k = 0
    for tt in range(2):
        A(f's_lshl_b32 s34, s{44+tt}, 8')
        A(f's_add_u32 s34, s34, {LST}')
        A('v_lshl_add_u32 v5, v4, 5, s34')
        for q in range(4):
            A(f'ds_read_b128 {v(RS+8*q,4)}, v5 offset:{64*q}')
            A(f'ds_read_b128 {v(RS+8*q+4,4)}, v5 offset:{64*q+16}')
        A('s_waitcnt lgkmcnt(0)')
        if tt == 0: A('s_nop 3')
        for ft in range(2):
            for m in range(2):
                b = acc[tt][ft] + 8*m
                for i in range(8): A(f'v_mul_f32 v{b+i}, v{RS+16*m+2*i+1}, v{b+i}')
                d = T + 16 + 4*(k % 4); k += 1
                for i in range(4): A(f'v_cvt_pk_bf16_f32 v{d+i}, v{b+2*i}, v{b+2*i+1}')
                A(f'buffer_store_dwordx4 {v(d,4)}, v{vSt[ft]}, {sr(SW)}, s{50+tt} offen offset:{640*m} {SC1}')
    A('qkv_out:')
    stamp(A, 1, 3, T)
    A('s_waitcnt vmcnt(0)')
    stamp(A, 1, 4, T)
    A('L_h1:')
    A('s_barrier')
    A('s_and_b32 s21, s2, 7')
    A('s_lshl_b32 s22, s21, 3')
    signal_wait(A, 4, 21, 8, 8, 22, 8, 30, 4)
    A('s_branch L_att')
    A('L_h1_spare:')
    A('s_barrier')
    A('s_and_b32 s21, s2, 7')
    A('s_lshl_b32 s22, s21, 3')
    signal_wait(A, 4, 21, 8, 8, 22, 8, 30, 4, do_signal=False)

PANEL = 61440
def maps_att(A):
    if OPT.get('map', 'g') == 'g':
        A('s_and_b32 s31, s2, 7')
        A('s_lshr_b32 s30, s2, 3')
    else:
        A('s_and_b32 s20, s2, 7')
        A('s_lshr_b32 s21, s2, 3')
        A('s_lshl_b32 s30, s20, 2')
        A('s_and_b32 s22, s21, 3')
        A('s_add_u32 s30, s30, s22')
        A('s_lshr_b32 s31, s21, 2')
def maps_sk(A, rt, ft):
    A('s_and_b32 s20, s2, 7')
    A('s_lshr_b32 s21, s2, 3')
    if OPT.get('map', 'g') == 'g':
        A(f's_lshl_b32 s{rt}, s20, 2')
        A('s_lshr_b32 s22, s21, 3')
        A(f's_add_u32 s{rt}, s{rt}, s22')
        A(f's_and_b32 s{ft}, s21, 7')
    else:
        A('s_lshr_b32 s22, s20, 1')
        A(f's_lshl_b32 s{rt}, s22, 3')
        A('s_lshr_b32 s22, s21, 2')
        A(f's_add_u32 s{rt}, s{rt}, s22')
        A('s_and_b32 s22, s20, 1')
        A(f's_lshl_b32 s{ft}, s22, 2')
        A('s_and_b32 s22, s21, 3')
        A(f's_add_u32 s{ft}, s{ft}, s22')
def maps_gu(A, rt, ct):
    A('s_and_b32 s20, s2, 7')
    A('s_lshr_b32 s21, s2, 3')
    if OPT.get('map', 'g') == 'g':
        A(f's_lshl_b32 s{rt}, s20, 1')
        A('s_lshr_b32 s22, s21, 4')
        A(f's_add_u32 s{rt}, s{rt}, s22')
        A(f's_and_b32 s{ct}, s21, 15')
    else:
        A('s_lshr_b32 s22, s20, 1')
        A(f's_lshl_b32 s{rt}, s22, 2')
        A('s_lshr_b32 s22, s21, 3')
        A(f's_add_u32 s{rt}, s{rt}, s22')
        A('s_and_b32 s22, s20, 1')
        A(f's_lshl_b32 s{ct}, s22, 3')
        A('s_and_b32 s22, s21, 7')
        A(f's_add_u32 s{ct}, s{ct}, s22')

def prep_load(A, PT):
    a6, a7 = PT+10, PT+11
    A('s_mul_i32 s60, s3, 5120')
    A(f's_add_u32 s60, s60, {PANEL}')
    A('s_cmp_ge_u32 s2, 188')
    A('s_cbranch_scc1 prep_l_done')
    A('s_cmp_ge_u32 s2, 120')
    A('s_cbranch_scc1 prep_l_sk')
    A(f's_load_dwordx2 s[{SA}:{SA+1}], s[0:1], 32')
    A(f's_load_dwordx2 s[{SB}:{SB+1}], s[0:1], 40')
    div_magic(A, 61, 2, 5)
    A('s_mul_i32 s62, s61, 5')
    A('s_sub_u32 s62, s2, s62')
    A('s_lshl_b32 s63, s62, 3')
    A('s_add_u32 s63, s63, s3')
    A(f'v_lshrrev_b32 v{a6}, 3, v{VL}')
    A(f'v_mul_u32_u24 v{a6}, 3072, v{a6}')
    A(f'v_and_b32 v{a7}, 7, v{VL}')
    A(f'v_lshl_add_u32 v{a6}, v{a7}, 4, v{a6}')
    A('s_mul_i32 s64, s63, 49152')
    A('s_lshl_b32 s65, s61, 7')
    A('s_add_u32 s64, s64, s65')
    A(f's_add_u32 s65, s64, {8*3072 - 1024}')
    A('s_mov_b32 m0, s60')
    A('s_waitcnt lgkmcnt(0)')
    srd(A, SA, SA, 640*1536*2)
    srd(A, SB, SB, 640*1536*2)
    A(f'buffer_load_dwordx4 v{a6}, {sr(SA)}, s64 offen lds')
    A(f'buffer_load_dwordx4 v{a6}, {sr(SA)}, s65 offen offset:1024 lds')
    A('s_add_u32 s66, s60, 2048')
    A('s_mov_b32 m0, s66')
    A('s_nop 0')
    A(f'buffer_load_dwordx4 v{a6}, {sr(SB)}, s64 offen lds')
    A(f'buffer_load_dwordx4 v{a6}, {sr(SB)}, s65 offen offset:1024 lds')
    A('s_branch prep_l_done')
    A('prep_l_sk:')
    for j in range(5):
        A(f'v_add_u32 v{a6}, {64*j}, v{VL}')
        A(f'v_mul_u32_u24 v{PT+j}, 6554, v{a6}')
        A(f'v_lshrrev_b32 v{PT+j}, 16, v{PT+j}')
        A(f'v_mul_u32_u24 v{a7}, 10, v{PT+j}')
        A(f'v_sub_u32 v{PT+5+j}, v{a6}, v{a7}')
    A('s_cmp_ge_u32 s2, 168')
    A('s_cbranch_scc1 prep_l_wo')
    A(f's_load_dwordx2 s[{SA}:{SA+1}], s[0:1], 48')
    A('s_sub_u32 s61, s2, 120')
    A('s_lshl_b32 s61, s61, 3')
    A('s_add_u32 s61, s61, s3')
    div_magic(A, 62, 61, 48)
    A('s_mul_i32 s63, s62, 48')
    A('s_sub_u32 s63, s61, s63')
    A('s_mul_i32 s64, s61, 5120')
    A(f's_add_u32 s64, s64, {WS_WD}')
    A('s_lshl_b32 s65, s63, 5')
    for j in range(5): A(f'v_add_u32 v{PT+j}, s65, v{PT+j}')
    A('s_waitcnt lgkmcnt(0)')
    srd(A, SA, SA, 1536*640*2)
    A('s_branch prep_l_sk2')
    A('prep_l_wo:')
    A(f's_load_dwordx2 s[{SA}:{SA+1}], s[0:1], 16')
    A('s_sub_u32 s61, s2, 168')
    A('s_lshl_b32 s61, s61, 3')
    A('s_add_u32 s61, s61, s3')
    div_magic(A, 62, 61, 20)
    A('s_mul_i32 s63, s62, 20')
    A('s_sub_u32 s63, s61, s63')
    A('s_mul_i32 s64, s61, 5120')
    A(f's_add_u32 s64, s64, {WS_WO}')
    A('s_waitcnt lgkmcnt(0)')
    srd(A, SA, SA, 640*640*2)
    A('s_cmp_ge_u32 s63, 16')
    A('s_cbranch_scc1 prep_l_rem')
    A('s_mul_i32 s65, s63, 40')
    for j in range(5):
        A(f'v_lshrrev_b32 v{a6}, 4, v{PT+j}')
        A(f'v_lshl_add_u32 v{PT+j}, v{a6}, 2, v{PT+j}')
        A(f'v_add_u32 v{PT+j}, s65, v{PT+j}')
    A('s_branch prep_l_sk2')
    A('prep_l_rem:')
    A('s_sub_u32 s65, s63, 16')
    A('s_mul_i32 s65, s65, 160')
    A('s_add_u32 s65, s65, 16')
    for j in range(5):
        A(f'v_bfe_u32 v{a6}, v{PT+j}, 4, 1')
        A(f'v_bfe_u32 v{a7}, v{PT+j}, 2, 1')
        A(f'v_lshl_add_u32 v{a6}, v{a6}, 1, v{a7}')
        A(f'v_bfe_u32 v{a7}, v{PT+j}, 3, 1')
        A(f'v_lshl_add_u32 v{a6}, v{a6}, 1, v{a7}')
        A(f'v_mul_u32_u24 v{a6}, 20, v{a6}')
        A(f'v_and_b32 v{a7}, 3, v{PT+j}')
        A(f'v_add3_u32 v{PT+j}, v{a6}, v{a7}, s65')
    A('prep_l_sk2:')
    A('s_mul_i32 s65, s62, 160')
    for j in range(5):
        A(f'v_mul_u32_u24 v{PT+j}, 1280, v{PT+j}')
        A(f'v_lshl_add_u32 v{PT+j}, v{PT+5+j}, 4, v{PT+j}')
    for j in range(5):
        A(f's_add_u32 s66, s60, {1024*j}')
        A('s_mov_b32 m0, s66')
        A('s_nop 0')
        A(f'buffer_load_dwordx4 v{PT+j}, {sr(SA)}, s65 offen lds')
    A('prep_l_done:')

CSL = PANEL + 40960
def prep_store(A, PT):
    F0 = PT; a6, a7, a8, on = PT+20, PT+21, PT+22, PT+23; c0 = PT+24
    A('s_cmp_ge_u32 s2, 188')
    A('s_cbranch_scc1 prep_s_done')
    A(f'v_and_b32 v3, 3, v{VL}')
    A(f'v_bfe_u32 v4, v{VL}, 2, 2')
    A(f'v_lshrrev_b32 v5, 4, v{VL}')
    A('s_cmp_ge_u32 s2, 120')
    A('s_cbranch_scc1 prep_s_sk')
    A(f'v_and_b32 v{a7}, 1, v5')
    A(f'v_lshrrev_b32 v{a8}, 1, v5')
    A(f'v_lshl_add_u32 v{a8}, v{a8}, 3, v4')
    A(f'v_lshlrev_b32 v{a8}, 7, v{a8}')
    A(f'v_lshl_add_u32 v{a8}, v{a7}, 11, v{a8}')
    A(f'v_lshl_add_u32 v{a8}, v3, 3, v{a8}')
    A(f'v_add_u32 v{a8}, s60, v{a8}')
    for m in range(4):
        A(f'ds_read_b64_tr_b16 {v(F0+4*m,2)}, v{a8} offset:{32*m}')
        A(f'ds_read_b64_tr_b16 {v(F0+4*m+2,2)}, v{a8} offset:{32*m+512}')
    A(f'v_mov_b32 v{on}, {ONES:#x}')
    A('s_waitcnt lgkmcnt(0)')
    for m in range(4):
        A('s_lshl_b32 s66, s61, 2')
        A(f's_add_u32 s66, s66, {m}')
        div_magic(A, 67, 66, 6)
        A('s_mul_i32 s68, s67, 6')
        A('s_sub_u32 s68, s66, s68')
        A('s_mul_i32 s67, s67, 40')
        A('s_add_u32 s67, s67, s63')
        A('s_mul_i32 s67, s67, 6')
        A('s_add_u32 s67, s67, s68')
        A('s_lshl_b32 s67, s67, 10')
        A(f's_add_u32 s67, s67, {WS_WGU}')
        A(f'buffer_store_dwordx4 {v(F0+4*m,4)}, v{VL16}, {sr(SW)}, s67 offen sc1')
    for m in range(4):
        A(f'v_dot2_f32_bf16 v{c0+m}, v{F0+4*m}, v{on}, 0')
        for j in range(1, 4):
            A(f'v_dot2_f32_bf16 v{c0+m}, v{F0+4*m+j}, v{on}, v{c0+m}')
    A('s_lshl_b32 s66, s3, 10')
    A(f's_add_u32 s66, s66, {CSL}')
    A(f'v_lshl_add_u32 v{a6}, v{VL}, 2, s66')
    A('s_nop 1')
    for m in range(4):
        A(f'ds_write_b32 v{a6}, v{c0+m} offset:{256*m}')
    A('s_branch prep_s_done')
    A('prep_s_sk:')
    A(f'v_lshrrev_b32 v{a6}, 1, v5')
    A(f'v_and_b32 v{a7}, 1, v5')
    A(f'v_lshl_add_u32 v{a6}, v{a6}, 2, v{a7}')
    A(f'v_lshl_add_u32 v{a6}, v{a6}, 2, v4')
    A(f'v_mul_u32_u24 v{a6}, 160, v{a6}')
    A(f'v_add_u32 v{a6}, s60, v{a6}')
    A(f'v_lshl_add_u32 v{a8}, v3, 4, v{a6}')
    A(f'v_lshl_add_u32 v{a7}, v3, 3, v{a6}')
    for F in range(5):
        ar, co = (a8, 64*(F//2) + 8*(F%2)) if F < 4 else (a7, 128)
        A(f'ds_read_b64_tr_b16 {v(F0+4*F,2)}, v{ar} offset:{co}')
        A(f'ds_read_b64_tr_b16 {v(F0+4*F+2,2)}, v{ar} offset:{co+1280}')
    A('s_add_u32 s66, s64, 4096')
    A('s_waitcnt lgkmcnt(0)')
    for F in range(4):
        A(f'buffer_store_dwordx4 {v(F0+4*F,4)}, v{VL16}, {sr(SW)}, s64 offen offset:{1024*F} sc1')
    A(f'buffer_store_dwordx4 {v(F0+16,4)}, v{VL16}, {sr(SW)}, s66 offen sc1')
    A('prep_s_done:')

def prep_colsum(A, PT):
    A('s_cmp_ge_u32 s2, 120')
    A('s_cbranch_scc1 prep_c_done')
    A('s_cmp_ge_u32 s3, 2')
    A('s_cbranch_scc1 prep_c_done')
    A('v_lshrrev_b32 v3, 5, v0')
    A('v_and_b32 v4, 31, v0')
    A('v_lshlrev_b32 v3, 8, v3')
    A('v_lshl_add_u32 v3, v4, 2, v3')
    A(f'v_add_u32 v3, {CSL}, v3')
    for w in range(8):
        if w == 4: A('s_waitcnt lgkmcnt(4)')
        for h in range(2):
            A(f'ds_read_b32 v{PT+2*w+h}, v3 offset:{1024*w+128*h}')
    A('s_mul_i32 s66, s62, 12288')
    A('s_lshl_b32 s67, s61, 9')
    A('s_add_u32 s66, s66, s67')
    A(f's_add_u32 s66, s66, {WS_CS}')
    A('v_lshlrev_b32 v4, 2, v0')
    A('s_waitcnt lgkmcnt(0)')
    for i in range(1, 16): A(f'v_add_f32 v{PT}, v{PT}, v{PT+i}')
    A(f'buffer_store_dword v{PT}, v4, {sr(SW)}, s66 offen sc1')
    A('prep_c_done:')

def ph_att(A):
    SLOT = 20480
    R = Alloc(V0, 256)
    Q16 = [R(4, 4) for _ in range(2)]; Q8 = [R(2) for _ in range(2)]
    S = [R(16, 4) for _ in range(2)]
    P = [R(8, 4) for _ in range(2)]
    O = [R(16, 4) for _ in range(2)]
    K16 = [R(4, 4) for _ in range(2)]; K8 = [R(2) for _ in range(2)]
    V = [R(8, 4) for _ in range(2)]
    aK, aK8, aV, vPa, vPd = R(), R(), R(), R(), R()
    T = R(8, 4)
    PT = R(28, 4)
    XR = R(12, 4)
    vm = VM(A)
    A('L_att:')
    stamp(A, 2, 0, T)
    maps_att(A)
    A('s_and_b32 s32, s3, 3')
    A('s_lshr_b32 s33, s3, 2')
    A('s_mul_i32 s36, s30, 163840')
    A(f's_add_u32 s36, s36, {WS_KV}')
    A('s_lshl_b32 s37, s33, 5')
    A('s_add_u32 s37, s37, s32')
    A('s_mul_i32 s37, s37, 2560')
    A('s_add_u32 s37, s37, s36')
    A('s_mul_i32 s38, s3, 2560')
    KVF = SC1 + (' nt' if 'kvnt' in OPT else '')
    def dma(st, j):
        r = [f's_add_u32 s39, s38, {(st % 3)*SLOT}', 's_mov_b32 m0, s39']
        if j == 2: r.append(f's_mov_b64 exec, s[{M32}:{M32+1}]')
        else: r.append('s_nop 0')
        r.append((f'buffer_load_dwordx4 v{VL16}, {sr(SW)}, s37 offen offset:{1024*j} {KVF} lds', f'kv{st}'))
        if j == 2: r += ['s_mov_b64 exec, -1', 's_add_u32 s37, s37, 10240']
        return r
    def emit(lst):
        for x in lst:
            if isinstance(x, tuple): vm(*x)
            elif callable(x): x()
            else: A(x)
    for j in range(3): emit(dma(0, j))
    A('s_lshl_b32 s34, s31, 3')
    A('s_lshl_b32 s35, s32, 1')
    A('s_add_u32 s34, s34, s35')
    A('s_mul_i32 s39, s30, 64')
    A('s_add_u32 s39, s39, s34')
    A('s_mul_i32 s39, s39, 1280')
    A(f's_add_u32 s40, s39, {WS_Q}')
    A(f'v_lshlrev_b32 v5, 3, v{VL}')
    for x in range(2):
        A(f'v_mov_b32 v{Q8[x]}, 0'); A(f'v_mov_b32 v{Q8[x]+1}, 0')
    for x in range(2):
        vm(f'buffer_load_dwordx2 {v(Q16[x],2)}, v5, {sr(SW)}, s40 offen offset:{1280*x} {SC1}', 'kv0')
        vm(f'buffer_load_dwordx2 {v(Q16[x]+2,2)}, v5, {sr(SW)}, s40 offen offset:{1280*x+512} {SC1}', 'kv0')
    A(f's_mov_b64 exec, s[{M32}:{M32+1}]')
    for x in range(2):
        vm(f'buffer_load_dwordx2 {v(Q8[x],2)}, v5, {sr(SW)}, s40 offen offset:{1280*x+1024} {SC1}', 'kv0')
    A('s_mov_b64 exec, -1')
    for j in range(3): emit(dma(1, j))
    A(f'v_and_b32 v3, 31, v{VL}')
    A(f'v_lshrrev_b32 v4, 5, v{VL}')
    A('s_mul_i32 s44, s33, 10240')
    A(f'v_add_u32 v{aK}, s44, v5')
    A('v_mul_u32_u24 v7, 320, v4')
    A('v_lshl_add_u32 v7, v3, 4, v7')
    A(f'v_add_u32 v{aV}, s44, v7')
    A('s_mov_b32 s46, 0x11000000'); A('s_mov_b32 s47, 0x11000000')
    A(f'v_mov_b32 v6, {ONES:#x}')
    A(f'v_cndmask_b32_e64 v7, 0, v6, s[46:47]')
    for b in range(2):
        for i in range(8): A(f'v_mov_b32 v{V[b]+i}, v7')
        A(f'v_mov_b32 v{K8[b]}, v6')
        A(f'v_mov_b32 v{K8[b]+1}, 0')
    for x in range(2):
        for i in range(16): A(f'v_mov_b32 v{O[x]+i}, 0')
    for i in range(4): A(f'v_mov_b32 v{P[1]+4+i}, 0')
    vm.wait('kv0')
    A('s_barrier')
    stamp(A, 2, 1, T)
    A(f'ds_read2st64_b64 {v(K16[1],4)}, v5 offset0:0 offset1:1')
    A(f'ds_read2st64_b64 {v(K16[0],4)}, v{aK} offset0:0 offset1:1')
    A(f's_mov_b64 exec, s[{M32}:{M32+1}]')
    A(f'ds_read_b64 {v(K8[1],2)}, v5 offset:1024')
    A(f'ds_read_b64 {v(K8[0],2)}, v{aK} offset:1024')
    A(f's_mov_b64 exec, s[{MD20}:{MD20+1}]')
    A(f'ds_read_b128 {v(V[0],4)}, v{aV} offset:1280')
    A(f'ds_read_b128 {v(V[0]+4,4)}, v{aV} offset:1920')
    A('s_mov_b64 exec, -1')
    A('s_waitcnt lgkmcnt(3)')
    for x in range(2):
        A(f'v_mfma_f32_32x32x16_bf16 {v(S[x],16)}, {v(K16[1],4)}, {v(Q16[x],4)}, 0')
    for x in range(2):
        A(f'v_mfma_f32_32x32x8bf16_1k {v(S[x],16)}, {v(K8[1],2)}, {v(Q8[x],2)}, {v(S[x],16)}')
    for j in range(3): emit(dma(2, j))
    prep_load(A, PT)
    def rowmax(dst, src, t):
        A(f'v_max3_f32 v{dst}, v{src}, v{src+1}, v{src+2}')
        for i in range(3, 15, 2):
            A(f'v_max3_f32 v{dst}, v{src+i}, v{src+i+1}, v{dst}')
        A(f'v_max_f32 v{dst}, v{src+15}, v{dst}')
        A(f'v_mov_b32 v{t}, v{dst}')
        A('s_nop 1')
        A(f'v_permlane32_swap_b32 v{dst}, v{t}')
        A(f'v_max_f32 v{dst}, v{dst}, v{t}')
    A('s_nop 7')
    for x in range(2):
        rowmax(T, S[x], T+1)
        A(f'v_sub_f32 v{T}, 0, v{T}')
        A(f'v_and_b32 v{T+1}, 0xffff0000, v{T}')
        A(f'v_sub_f32 v{T}, v{T}, v{T+1}')
        A(f'v_cvt_pk_bf16_f32 v{T}, v{T+1}, v{T}')
        A(f'v_cndmask_b32_e64 v{Q8[x]}, v{T}, v{Q8[x]}, s[{M32}:{M32+1}]')
    A('s_waitcnt lgkmcnt(0)')
    A(f'v_mfma_f32_32x32x16_bf16 {v(S[0],16)}, {v(K16[0],4)}, {v(Q16[0],4)}, 0')
    A(f'v_mfma_f32_32x32x8bf16_1k {v(S[0],16)}, {v(K8[0],2)}, {v(Q8[0],2)}, {v(S[0],16)}')
    maps_sk(A, 70, 71)
    A('s_mul_i32 s72, s71, 102400')
    A('s_mul_i32 s73, s3, 12800')
    A('s_add_u32 s72, s72, s73')
    A(f's_add_u32 s72, s72, {WS_WO}')
    A(f's_add_u32 s73, s73, {PANEL}')
    A(f'v_lshlrev_b32 v{vPa}, 7, v{VL}')
    A(f'v_add_u32 v{vPa}, {WS_CNT + 128*L_P}, v{vPa}')
    A('s_nop 4')
    def panel(j):
        r = []
        if j % 4 == 0 and j: r += ['s_add_u32 s72, s72, 4096', 's_add_u32 s73, s73, 4096']
        r += ['s_mov_b32 m0, s73']
        r.append(f's_mov_b64 exec, s[{M32}:{M32+1}]' if j == 12 else 's_nop 0')
        r.append((f'buffer_load_dwordx4 v{VL16}, {sr(SW)}, s72 offen offset:{1024*(j%4)} {SC1} lds', 'panel'))
        if j == 12: r.append('s_mov_b64 exec, -1')
        return r
    extra = {i: [] for i in range(64)}
    for st in range(1, 6):
        for j in range(3): extra[8*st - 1 + 2*j].append(dma(st + 2, j))
    for j in range(13): extra[39 + (j*22)//13 + 1].append(panel(j))
    def only_wave(w, fn):
        def f():
            L = A.label('ow')
            A(f's_cmp_lg_u32 s3, {w}')
            A(f's_cbranch_scc1 {L}')
            fn()
            A(f'{L}:')
        return f
    def sigP():
        A('s_and_b32 s20, s2, 7')
        A('s_lshl_b32 s20, s20, 7')
        A(f's_add_u32 s20, s20, {WS_CNT + 128*L_P}')
        A(f'v_mov_b32 v{PT}, 0'); A(f'v_mov_b32 v{PT+1}, 1')
        A('s_mov_b64 exec, 1')
        A(f'buffer_atomic_add v{PT+1}, v{PT}, {sr(SW)}, s20 offen sc1')
        A('s_mov_b64 exec, -1')
    def pollP():
        A('s_mov_b64 exec, 0xff')
        A(f'buffer_load_dword v{vPd}, v{vPa}, {sr(SW)}, 0 offen sc1')
        A('s_mov_b64 exec, -1')
    def xres():
        load_ptr_srd(A, SA, 0, 2048*640*2)
        A('s_lshl_b32 s74, s70, 6')
        A('s_lshl_b32 s75, s32, 4')
        A('s_add_u32 s74, s74, s75')
        A('s_mul_i32 s74, s74, 1280')
        A('s_mul_i32 s75, s71, 160')
        A('s_add_u32 s74, s74, s75')
        A(f'v_and_b32 v3, 15, v{VL}')
        A(f'v_lshrrev_b32 v4, 4, v{VL}')
        A('v_mul_u32_u24 v5, 1280, v3')
        A('v_lshl_add_u32 v6, v4, 4, v5')
        A('v_lshl_add_u32 v7, v4, 3, v5')
        vm(f'buffer_load_dwordx4 {v(XR,4)}, v6, {sr(SA)}, s74 offen', 'x')
        vm(f'buffer_load_dwordx4 {v(XR+4,4)}, v6, {sr(SA)}, s74 offen offset:64', 'x')
        vm(f'buffer_load_dwordx2 {v(XR+8,2)}, v7, {sr(SA)}, s74 offen offset:128', 'x')
    extra[45].append([xres])
    for it in range(64):
        st, tl, x = it >> 3, (it >> 1) & 3, it & 1
        cur, nxt = S[x], S[x ^ 1]
        kb = (tl + x) & 1
        e = lambda i: f'v_exp_f32 v{cur+i}, v{cur+i}'
        c = lambda j: f'v_cvt_pk_bf16_f32 v{P[x]+j}, v{cur+2*j}, v{cur+2*j+1}'
        post = []
        if tl == 3 and x == 0:
            b = st + 1
            if b == 1:
                vm.wait('kv1', 'lgkmcnt(0)')
            elif b == 2:
                vm.wait_all('lgkmcnt(0)')
                prep_store(A, PT)
                A('s_waitcnt lgkmcnt(0)')
                post = [lambda: prep_colsum(A, PT)]
            elif b == 3:
                vm.wait_all('lgkmcnt(0)')
                post = [only_wave(1, sigP)]
            elif b == 5:
                vm.wait_all('lgkmcnt(0)')
                only_wave(2, lambda: spin(A, vPa, vPd, 32, '0xff', first_issued=True))()
            elif b <= 7:
                vm.wait(f'kv{b}', 'lgkmcnt(0)')
            else:
                A('s_waitcnt lgkmcnt(0)')
            A('s_barrier')
        elif it > 0:
            A('s_waitcnt lgkmcnt(0)')
        last = it == 63
        gt = st*4 + tl + 1
        ts, tn = (gt >> 2) % 3, gt & 3
        if not last:
            A(f'v_mfma_f32_32x32x16_bf16 {v(nxt,16)}, {v(K16[kb],4)}, {v(Q16[x^1],4)}, 0')
        if gt < 32:
            o = ts*SLOT + tn*2560
            if x == 0:
                A(f'ds_read2st64_b64 {v(K16[(tl+1)&1],4)}, v{aK} offset0:{o//512} offset1:{o//512+1}')
            else:
                A(f's_mov_b64 exec, s[{MD20}:{MD20+1}]')
                A(f'ds_read_b128 {v(V[(tl+1)&1],4)}, v{aV} offset:{o+1280}')
                A(f'ds_read_b128 {v(V[(tl+1)&1]+4,4)}, v{aV} offset:{o+1920}')
                A('s_mov_b64 exec, -1')
        for y in (e(0), e(1), e(2), c(0), e(3)): A(y)
        if not last:
            A(f'v_mfma_f32_32x32x8bf16_1k {v(nxt,16)}, {v(K8[kb],2)}, {v(Q8[x^1],2)}, {v(nxt,16)}')
        for y in (e(4), c(1), e(5), e(6), c(2), e(7)): A(y)
        vprev = V[tl & 1] if x == 1 else V[(tl - 1) & 1]
        A(f'v_mfma_f32_32x32x16_bf16 {v(O[x^1],16)}, {v(vprev+4,4)}, {v(P[x^1]+4,4)}, {v(O[x^1],16)}')
        if x == 0 and gt < 32:
            A(f's_mov_b64 exec, s[{M32}:{M32+1}]')
            A(f'ds_read_b64 {v(K8[(tl+1)&1],2)}, v{aK} offset:{o+1024}')
            A('s_mov_b64 exec, -1')
        for lst in extra[it]: emit(lst)
        for y in (e(8), c(3), e(9), e(10), c(4), e(11)): A(y)
        A(f'v_mfma_f32_32x32x16_bf16 {v(O[x],16)}, {v(V[tl&1],4)}, {v(P[x],4)}, {v(O[x],16)}')
        for f in post: f()
        if it == 36: only_wave(2, pollP)()
        for y in (e(12), c(5), e(13), e(14), e(15), c(6), c(7)): A(y)
    A('s_lshl_b32 s46, s3, 12')
    A(f'v_add_u32 v5, s46, v{VL16}')
    A(f'v_mfma_f32_32x32x16_bf16 {v(O[1],16)}, {v(V[1]+4,4)}, {v(P[1]+4,4)}, {v(O[1],16)}')
    stamp(A, 2, 2, T)
    A('v_xor_b32 v6, 0x4000, v5')
    A('s_add_u32 s34, s34, s33')
    A('s_mul_i32 s47, s34, 40960')
    A(f's_add_u32 s47, s47, {WS_O}')
    A('s_lshl_b32 s48, s30, 10')
    A('s_add_u32 s48, s48, s47')
    A('s_lshr_b32 s49, s30, 1')
    A('s_lshl_b32 s49, s49, 9')
    A('s_and_b32 s50, s30, 1')
    A('s_lshl_b32 s50, s50, 3')
    A('s_add_u32 s49, s49, s50')
    A('s_add_u32 s49, s49, s47')
    A('s_add_u32 s49, s49, 32768')
    A(f's_mov_b32 s51, {f2u(2.0**40):#x}')
    A('s_cmp_eq_u32 s33, 0')
    A('s_cbranch_scc1 att_x0')
    for q in range(4): A(f'ds_write_b128 v5, {v(O[0]+4*q,4)} offset:{1024*q}')
    A('s_waitcnt lgkmcnt(0)')
    for i in range(13): A(f'v_mov_b32 v{O[0]+i}, v{O[1]+i}')
    for i in range(4): A(f'v_mov_b32 v{Q16[0]+i}, v{Q16[1]+i}')
    for i in range(2): A(f'v_mov_b32 v{Q8[0]+i}, v{Q8[1]+i}')
    A('s_branch att_x1')
    A('att_x0:')
    for q in range(4): A(f'ds_write_b128 v5, {v(O[1]+4*q,4)} offset:{1024*q}')
    A('s_waitcnt lgkmcnt(0)')
    A('att_x1:')
    A('s_barrier')
    for q in range(4): A(f'ds_read_b128 {v(S[0]+4*q,4)}, v6 offset:{1024*q}')
    A('s_waitcnt lgkmcnt(0)')
    for i in range(13): A(f'v_add_f32 v{O[0]+i}, v{O[0]+i}, v{S[0]+i}')
    A(f'v_cmp_nle_f32 vcc, v{O[0]+12}, s51')
    A('s_nop 4')
    A('s_cbranch_vccnz att_slow')
    A('att_fin:')
    A(f'v_rcp_f32 v{T}, v{O[0]+12}')
    A('s_nop 0')
    for i in range(12): A(f'v_mul_f32 v{O[0]+i}, v{T}, v{O[0]+i}')
    for j in range(6): A(f'v_cvt_pk_bf16_f32 v{P[0]+j}, v{O[0]+2*j}, v{O[0]+2*j+1}')
    A(f'buffer_store_dwordx4 {v(P[0],4)}, v{VL16}, {sr(SW)}, s48 offen {SC1}')
    A(f's_mov_b64 exec, s[{M32}:{M32+1}]')
    A(f'buffer_store_dwordx2 {v(P[0]+4,2)}, v{VL16}, {sr(SW)}, s49 offen {SC1}')
    A('s_mov_b64 exec, -1')
    stamp(A, 2, 3, T)

    def slow(A):
        A('att_slow:')
        m_, al = T+2, T+3
        A(f'v_and_b32 v3, 31, v{VL}')
        A(f'v_lshrrev_b32 v4, 5, v{VL}')
        A(f'v_lshlrev_b32 v5, 3, v{VL}')
        A('v_mul_u32_u24 v7, 320, v4')
        A('v_lshl_add_u32 v7, v3, 4, v7')
        A(f'v_cndmask_b32_e64 v{Q8[0]}, 0, v{Q8[0]}, s[{M32}:{M32+1}]')
        A(f'v_mov_b32 v{m_}, 0xff800000')
        for i in range(16): A(f'v_mov_b32 v{O[0]+i}, 0')
        A('s_mov_b32 s45, 0')
        A('att_slow_loop:')
        A(f'buffer_load_dwordx2 {v(K16[0],2)}, v5, {sr(SW)}, s36 offen sc1')
        A(f'buffer_load_dwordx2 {v(K16[0]+2,2)}, v5, {sr(SW)}, s36 offen offset:512 sc1')
        A(f's_mov_b64 exec, s[{M32}:{M32+1}]')
        A(f'buffer_load_dwordx2 {v(K8[0],2)}, v5, {sr(SW)}, s36 offen offset:1024 sc1')
        A(f's_mov_b64 exec, s[{MD20}:{MD20+1}]')
        A(f'buffer_load_dwordx4 {v(V[0],4)}, v7, {sr(SW)}, s36 offen offset:1280 sc1')
        A(f'buffer_load_dwordx4 {v(V[0]+4,4)}, v7, {sr(SW)}, s36 offen offset:1920 sc1')
        A('s_mov_b64 exec, -1')
        A('s_add_u32 s36, s36, 2560')
        A('s_waitcnt vmcnt(0)')
        A(f'v_mfma_f32_32x32x16_bf16 {v(S[0],16)}, {v(K16[0],4)}, {v(Q16[0],4)}, 0')
        A(f'v_mfma_f32_32x32x8bf16_1k {v(S[0],16)}, {v(K8[0],2)}, {v(Q8[0],2)}, {v(S[0],16)}')
        A('s_nop 15')
        rowmax(T, S[0], T+1)
        A(f'v_max_f32 v{T}, v{T}, v{m_}')
        A(f'v_sub_f32 v{al}, v{m_}, v{T}')
        A(f'v_exp_f32 v{al}, v{al}')
        A(f'v_mov_b32 v{m_}, v{T}')
        for i in range(16): A(f'v_sub_f32 v{S[0]+i}, v{S[0]+i}, v{m_}')
        for i in range(16): A(f'v_exp_f32 v{S[0]+i}, v{S[0]+i}')
        for i in range(16): A(f'v_mul_f32 v{O[0]+i}, v{al}, v{O[0]+i}')
        for j in range(8): A(f'v_cvt_pk_bf16_f32 v{P[0]+j}, v{S[0]+2*j}, v{S[0]+2*j+1}')
        A('s_nop 1')
        A(f'v_mfma_f32_32x32x16_bf16 {v(O[0],16)}, {v(V[0],4)}, {v(P[0],4)}, {v(O[0],16)}')
        A(f'v_mfma_f32_32x32x16_bf16 {v(O[0],16)}, {v(V[0]+4,4)}, {v(P[0]+4,4)}, {v(O[0],16)}')
        A('s_add_u32 s45, s45, 1')
        A('s_nop 15')
        A('s_cmp_lt_u32 s45, 64')
        A('s_cbranch_scc1 att_slow_loop')
        A('s_branch att_fin')
    return XR, slow

def finalize(A, Y, RES, t0):
    for j in range(10):
        A(f'v_lshlrev_b32 v{t0}, 16, v{RES+j}')
        A(f'v_and_b32 v{t0+1}, 0xffff0000, v{RES+j}')
        A(f'v_pk_add_f32 {v(Y+2*j,2)}, {v(Y+2*j,2)}, {v(t0,2)}')

GSTG, GNS, GNST = 20480, 7, 20
GTAB = GNS * GSTG
def ph_wo(A, XR):
    R = Alloc(V0, XR)
    vA, vR, vB = R(), R(), R()
    Af = R(40, 4)
    Bf = [R(20, 4) for _ in range(3)]
    Y = R(20, 4)
    SCR = 2 * GSTG
    A(f'v_and_b32 v3, 15, v{VL}')
    A(f'v_lshrrev_b32 v4, 4, v{VL}')
    A('v_lshlrev_b32 v5, 9, v4')
    A(f'v_lshl_add_u32 v{vA}, v3, 4, v5')
    A('s_mul_i32 s40, s33, 51200')
    A(f's_add_u32 s40, s40, {PANEL}')
    A(f'v_add_u32 v{vB}, s40, v{VL16}')
    A('s_lshl_b32 s34, s70, 1')
    A('s_bfe_u32 s35, s3, 0x10001')
    A('s_add_u32 s34, s34, s35')
    A('s_mul_i32 s76, s34, 40960')
    A('s_and_b32 s35, s3, 1')
    A('s_lshl_b32 s37, s35, 8')
    A('s_add_u32 s76, s76, s37')
    A('s_mul_i32 s41, s33, 20480')
    A('s_add_u32 s41, s41, s76')
    A(f's_add_u32 s41, s41, {WS_O}')
    A('s_mul_i32 s37, s71, 5120')
    A('s_add_u32 s76, s76, s37')
    A(f's_add_u32 s76, s76, {WS_H}')
    A('v_lshrrev_b32 v5, 1, v4')
    A('v_lshlrev_b32 v5, 9, v5')
    A('v_lshl_add_u32 v5, v3, 4, v5')
    A('v_and_b32 v6, 1, v4')
    A('v_lshl_add_u32 v5, v6, 3, v5')
    A(f'v_add_u32 v{vR}, 4096, v5')
    A('s_waitcnt vmcnt(0)')
    stamp(A, 2, 4, 4)
    A('s_barrier')
    def breads(S_): return [f'ds_read_b128 {v(Bf[S_%3]+4*F,4)}, v{vB} offset:{5120*S_ + 1024*F}' for F in range(5)]
    for S_ in range(2):
        for x in breads(S_): A(x)
    A(f's_add_u32 s21, s31, {L_H2}')
    A('s_lshr_b32 s22, s70, 2')
    A(f's_add_u32 s22, s22, {L_H2}')
    signal_wait(A, 0, 21, 1, 1, 22, 1, 32, 5)
    stamp(A, 3, 0, 5)
    for S_ in range(10):
        if S_ and S_ % 2 == 0: A('s_add_u32 s41, s41, 4096')
        A(f'buffer_load_dwordx4 {v(Af+4*S_,4)}, v{vA}, {sr(SW)}, s41 offen offset:{2048*(S_&1)} {SC1}')
    for S_ in range(10):
        A(f's_waitcnt vmcnt({9-S_}) lgkmcnt({5 if S_ < 9 else 0})')
        ms = [f'v_mfma_f32_16x16x32_bf16 {v(Y+4*F,4)}, {v(Bf[S_%3]+4*F,4)}, {v(Af+4*S_,4)}, ' + ('0' if S_ == 0 else v(Y+4*F,4)) for F in range(5)]
        for x in interleave(ms, breads(S_+2) if S_+2 < 10 else []): A(x)
    stamp(A, 3, 1, 5)
    A('s_mul_i32 s40, s32, 5120')
    A(f's_add_u32 s40, s40, {SCR}')
    A(f'v_add_u32 v5, s40, v{VL16}')
    A('s_cmp_eq_u32 s33, 0')
    A('s_cbranch_scc1 wo_fin')
    A('s_nop 3')
    for F in range(5): A(f'ds_write_b128 v5, {v(Y+4*F,4)} offset:{1024*F}')
    A('s_waitcnt lgkmcnt(0)')
    A('s_barrier')
    A('s_branch gu_loader')
    A('wo_fin:')
    A('s_nop 3')
    finalize(A, Y, XR, Af)
    A('s_barrier')
    for F in range(5): A(f'ds_read_b128 {v(Bf[0]+4*F,4)}, v5 offset:{1024*F}')
    for F in range(5):
        A(f's_waitcnt lgkmcnt({4-F})')
        for i in (0, 2): A(f'v_pk_add_f32 {v(Y+4*F+i,2)}, {v(Y+4*F+i,2)}, {v(Bf[0]+4*F+i,2)}')
    for j in range(10): A(f'v_cvt_pk_bf16_f32 v{HRES+j}, v{Y+2*j}, v{Y+2*j+1}')
    A(f'buffer_store_dwordx4 {v(HRES,4)}, v{vA}, {sr(SW)}, s76 offen {SC1}')
    A(f'buffer_store_dwordx4 {v(HRES+4,4)}, v{vA}, {sr(SW)}, s76 offen offset:2048 {SC1}')
    A(f'buffer_store_dwordx2 {v(HRES+8,2)}, v{vR}, {sr(SW)}, s76 offen {SC1}')
    s1, s2, on = Af, Af+1, Af+2
    A(f'v_mov_b32 v{on}, {ONES:#x}')
    A(f'v_dot2_f32_bf16 v{s2}, v{HRES}, v{HRES}, 0')
    A(f'v_dot2_f32_bf16 v{s1}, v{HRES}, v{on}, 0')
    for j in range(1, 10):
        A(f'v_dot2_f32_bf16 v{s2}, v{HRES+j}, v{HRES+j}, v{s2}')
        A(f'v_dot2_f32_bf16 v{s1}, v{HRES+j}, v{on}, v{s1}')
    A('s_lshl_b32 s34, s34, 3')
    A('s_add_u32 s34, s34, s71')
    A('s_lshl_b32 s34, s34, 8')
    A(f'v_permlane32_swap_b32 v{s1}, v{s2}')
    A(f'v_add_f32 v{s1}, v{s1}, v{s2}')
    A(f'v_mov_b32 v{s2}, v{s1}')
    A('s_lshl_b32 s37, s35, 6')
    A('s_add_u32 s34, s34, s37')
    A(f'v_permlane16_swap_b32 v{s1}, v{s2}')
    A(f'v_add_f32 v{s1}, v{s1}, v{s2}')
    A(f's_add_u32 s34, s34, {WS_ST}')
    A(f'v_lshrrev_b32 v5, 5, v{VL}')
    A('v_lshlrev_b32 v5, 7, v5')
    A('v_lshl_add_u32 v5, v3, 2, v5')
    A(f'buffer_store_dword v{s1}, v5, {sr(SW)}, s34 offen {SC1}')
    stamp(A, 3, 2, 5)

def ph_gu(A):
    NS, STG, NST = GNS, GSTG, GNST
    KAH = int(OPT.get('gk', 3))
    R = Alloc(V0, 256)
    aA, aB, bA, bB = R(), R(), R(), R()
    X = [[R(4, 4) for _ in range(2)] for _ in range(2)]
    W = [[R(4, 4) for _ in range(3)] for _ in range(2)]
    acc = [[R(16, 4) for _ in range(3)] for _ in range(2)]
    EX = [R(2) for _ in range(2)]; EW = [R(2) for _ in range(3)]
    tb = [R(4, 4), R(4, 4)]; nr = [R(2), R(2)]; cv = [R(2), R(2)]
    T = R(32, 4)
    maps_gu(A, 30, 31)
    A('s_and_b32 s32, s3, 1')
    A('s_lshr_b32 s33, s3, 1')
    A('s_lshl_b32 s34, s32, 12')
    A('s_add_u32 s34, s34, 12288')
    A(f'v_add_u32 v{bA}, s34, v{VL16}')
    A('s_mul_i32 s34, s33, 3072')
    A(f'v_add_u32 v{bB}, s34, v{VL16}')
    A(f'v_mov_b32 v{aA}, v{bA}'); A(f'v_mov_b32 v{aB}, v{bB}')
    for i in range(96): A(f'v_mov_b32 v{acc[0][0]+i}, 0')
    A('s_lshl_b32 s35, s30, 2')
    A('s_lshl_b32 s36, s32, 1')
    A('s_add_u32 s35, s35, s36')
    A('s_mul_i32 s36, s31, 6')
    A('s_mul_i32 s37, s33, 3')
    A('s_add_u32 s36, s36, s37')
    A('s_mul_i32 s38, s35, 98304')
    A('s_lshl_b32 s39, s36, 10')
    A('s_add_u32 s38, s38, s39')
    A(f's_add_u32 s50, s38, {WS_ACT}')
    A('s_add_u32 s51, s50, 98304')
    def reads(buf, s_):
        r = []
        for tt in range(2): r.append(f'ds_read_b128 {v(X[buf][tt],4)}, v{aA} offset:{2048*tt + 1024*s_}')
        for m in range(3): r.append(f'ds_read_b128 {v(W[buf][m],4)}, v{aB} offset:{6144*s_ + 1024*m}')
        return r
    def mfmas(buf):
        return [f'v_mfma_f32_32x32x16_bf16 {v(acc[tt][m],16)}, {v(W[buf][m],4)}, {v(X[buf][tt],4)}, {v(acc[tt][m],16)}' for m in range(3) for tt in range(2)]
    A('s_mov_b32 s37, 0')
    A(f's_mov_b32 s48, {NST}')
    A('s_lshr_b32 s21, s70, 1')
    A(f's_add_u32 s21, s21, {L_H3}')
    A(f's_add_u32 s22, s30, {L_H3}')
    A('s_waitcnt vmcnt(0)')
    stamp(A, 3, 3, T)
    A('s_barrier')
    signal_wait(A, 0, 21, 1, 1, 22, 1, 16, 5)
    stamp(A, 4, 0, T)
    A('s_barrier')
    stamp(A, 4, 1, T)
    for x in reads(0, 0): A(x)
    A('gu_loop:')
    A('s_waitcnt lgkmcnt(0)')
    for x in interleave(mfmas(0), reads(1, 1) + [f's_add_u32 s37, s37, {STG}', f's_cmp_eq_u32 s37, {NS*STG}', 's_cselect_b32 s37, 0, s37']): A(x)
    A('s_waitcnt lgkmcnt(0)')
    A('s_barrier')
    for x in interleave(mfmas(1), [f'v_add_u32 v{aA}, s37, v{bA}', f'v_add_u32 v{aB}, s37, v{bB}'] + reads(0, 0) + ['s_sub_u32 s48, s48, 1', 's_cmp_lg_u32 s48, 0']): A(x)
    A('s_cbranch_scc1 gu_loop')
    stamp(A, 4, 2, T)
    A(f'v_and_b32 v3, 31, v{VL}')
    A('s_lshl_b32 s34, s32, 10')
    A(f's_add_u32 s34, s34, {GTAB}')
    A('v_lshl_add_u32 v5, v3, 4, s34')
    for tt in range(2): A(f'ds_read_b128 {v(tb[tt],4)}, v5 offset:{512*tt}')
    A('s_mul_i32 s34, s33, 384')
    A(f's_add_u32 s34, s34, {GTAB+2048}')
    A('v_lshl_add_u32 v5, v3, 2, s34')
    for m in range(3): A(f'ds_read_b32 v{T+m}, v5 offset:{128*m}')
    A('s_waitcnt lgkmcnt(0)')
    A('s_barrier')
    for tt in range(2):
        ext_tok(A, tb[tt], EX[tt], T+4, T+5, M32)
        for i in range(2):
            A(f'v_mov_b32 v{nr[tt]+i}, v{tb[tt]+1}')
            A(f'v_mov_b32 v{cv[tt]+i}, v{tb[tt]+2}')
    for m in range(3): ext_feat(A, T+m, EW[m], T+4, T+5)
    A('s_nop 1')
    for m in range(3):
        for tt in range(2):
            A(f'v_mfma_f32_32x32x8bf16_1k {v(acc[tt][m],16)}, {v(EW[m],2)}, {v(EX[tt],2)}, {v(acc[tt][m],16)}')
    A('s_nop 6')
    k = 0
    for m in range(3):
        for tt in range(2):
            g = acc[tt][m]; u = g + 8
            z = T + 8*(k & 1); d = T + 16 + 4*(k & 3); k += 1
            for i in range(0, 8, 2): A(f'v_pk_mul_f32 {v(z+i,2)}, {v(g+i,2)}, {v(nr[tt],2)}')
            for i in range(8): A(f'v_exp_f32 v{z+i}, v{z+i}')
            for i in range(0, 8, 2): A(f'v_pk_mul_f32 {v(g+i,2)}, {v(g+i,2)}, {v(u+i,2)}')
            for i in range(0, 8, 2): A(f'v_pk_fma_f32 {v(z+i,2)}, {v(z+i,2)}, {v(cv[tt],2)}, {v(cv[tt],2)}')
            for i in range(8): A(f'v_rcp_f32 v{z+i}, v{z+i}')
            A('s_nop 0')
            for i in range(0, 8, 2): A(f'v_pk_mul_f32 {v(g+i,2)}, {v(g+i,2)}, {v(z+i,2)}')
            for j in range(4): A(f'v_cvt_pk_bf16_f32 v{d+j}, v{g+2*j}, v{g+2*j+1}')
            A(f'buffer_store_dwordx4 {v(d,4)}, v{VL16}, {sr(SW)}, s{50+tt} offen offset:{1024*m} {SC1}')
    stamp(A, 4, 3, T)
    A('s_branch L_down')
    A('gu_loader:')
    vm = VM(A)
    maps_gu(A, 30, 31)
    A('s_sub_u32 s32, s3, 4')
    A('s_lshl_b32 s33, s30, 2')
    A('s_add_u32 s33, s33, s32')
    A('s_mul_i32 s40, s33, 40960')
    A(f's_add_u32 s40, s40, {WS_H}')
    A('s_mul_i32 s34, s31, 245760')
    A('s_mul_i32 s35, s32, 3072')
    A('s_add_u32 s34, s34, s35')
    A(f's_add_u32 s34, s34, {WS_WGU}')
    A('s_lshl_b32 s36, s32, 11')
    A('s_add_u32 s36, s36, 12288')
    def issueB(st):
        A(f's_add_u32 s38, s35, {(st % NS)*STG}')
        A('s_mov_b32 m0, s38')
        A(f's_add_u32 s39, s34, {st*12288}')
        for j in range(3): vm(f'buffer_load_dwordx4 v{VL16}, {sr(SW)}, s39 offen offset:{1024*j} {SC1} lds', f'b{st}')
    def issueA(st):
        A(f's_add_u32 s38, s36, {(st % NS)*STG}')
        A('s_mov_b32 m0, s38')
        A(f's_add_u32 s39, s40, {st*2048}')
        for j in range(2): vm(f'buffer_load_dwordx4 v{VL16}, {sr(SW)}, s39 offen offset:{1024*j} {SC1} lds', f'a{st}')
    P0 = 32
    A('s_min_u32 s41, s32, 2')
    A('s_lshl_b32 s41, s41, 8')
    A('s_mul_i32 s42, s31, 768')
    A('s_add_u32 s42, s42, s41')
    A(f's_add_u32 s42, s42, {WS_CS}')
    A(f'v_lshlrev_b32 v3, 2, v{VL}')
    for kq in range(5):
        vm(f'buffer_load_dword v{P0+8+kq}, v3, {sr(SW)}, s42 offen sc1', 'cs')
        A('s_add_u32 s42, s42, 12288')
    for st in (0, 1, 3): issueB(st)
    A('s_barrier')
    for st in (2, 4, 5, 6): issueB(st)
    A('s_lshl_b32 s42, s33, 11')
    A(f's_add_u32 s42, s42, {WS_ST}')
    A('s_barrier')
    issueA(0)
    nxt = 1
    while nxt < KAH: issueA(nxt); nxt += 1
    for f in range(8): vm(f'buffer_load_dword v{P0+f}, v3, {sr(SW)}, s42 offen offset:{256*f} sc1', 'st')
    A('s_mul_i32 s44, s71, 48')
    A('s_mul_i32 s45, s32, 12')
    A('s_add_u32 s44, s44, s45')
    A('s_add_u32 s44, s44, 4')
    A('s_mul_i32 s44, s44, 5120')
    A(f's_add_u32 s44, s44, {WS_WD}')
    A('s_mul_i32 s45, s32, 5120')
    def issueD(ls):
        A(f's_add_u32 s38, s45, {ls*STG}')
        A('s_mov_b32 m0, s38')
        A(f's_add_u32 s39, s44, {ls*5120}')
        for j in range(4): vm(f'buffer_load_dwordx4 v{VL16}, {sr(SW)}, s39 offen offset:{1024*j} {SC1} lds', 'd')
        A('s_add_u32 s38, s38, 4096')
        A('s_mov_b32 m0, s38')
        A('s_add_u32 s39, s39, 4096')
        vm(f'buffer_load_dwordx4 v{VL16}, {sr(SW)}, s39 offen {SC1} lds', 'd')
    for st in range(NST):
        vm.wait(f'a{st}')
        A('s_barrier')
        lim = min(NST, st - 1 + NS + 1) if st >= 1 else NS
        want = min(lim, st + 1 + KAH + st)
        cnt = 0
        while nxt < want and cnt < 2:
            if nxt >= NS: issueB(nxt)
            issueA(nxt); nxt += 1; cnt += 1
        if st == 3:
            vm.wait('st')
            for f in range(1, 8): A(f'v_add_f32 v{P0}, v{P0}, v{P0+f}')
            for kq in range(1, 5): A(f'v_add_f32 v{P0+8}, v{P0+8}, v{P0+8+kq}')
            A(f'v_mov_b32 v{P0+1}, v{P0}')
            A('s_nop 1')
            A(f'v_permlane32_swap_b32 v{P0}, v{P0+1}')
            mean, nr_, cv_ = P0+4, P0+5, P0+6
            A(f'v_mul_f32 v{mean}, {f2u(1/640):#x}, v{P0}')
            A(f'v_mul_f32 v{P0+2}, v{mean}, v{mean}')
            A(f'v_mul_f32 v{cv_}, {f2u(1/640):#x}, v{P0+1}')
            A(f'v_sub_f32 v{cv_}, v{cv_}, v{P0+2}')
            A(f'v_max_f32 v{cv_}, 0, v{cv_}')
            A(f'v_add_f32 v{cv_}, {f2u(1e-5):#x}, v{cv_}')
            A(f'v_rsq_f32 v{nr_}, v{cv_}')
            A(f'v_and_b32 v4, 31, v{VL}')
            A(f'v_mul_f32 v{nr_}, {f2u(-math.log2(math.e)):#x}, v{nr_}')
            A('s_lshl_b32 s42, s32, 9')
            A(f's_add_u32 s42, s42, {GTAB}')
            A('v_lshl_add_u32 v5, v4, 4, s42')
            A(f'ds_write_b128 v5, {v(mean,4)}')
            A(f's_add_u32 s42, s41, {GTAB+2048}')
            A('v_add_u32 v5, s42, v3')
            A(f'ds_write_b32 v5, v{P0+8}')
            A('s_waitcnt lgkmcnt(0)')
        if st >= NST - NS + 1: issueD((st - 1) % NS)
    assert nxt == NST
    A('s_barrier')
    issueD((NST - 1) % NS)
    A('s_barrier')
    issueD(7)

def ph_down(A):
    R = Alloc(V0, 256)
    vA, vW2, vB0, vB1, vB2 = R(), R(), R(), R(), R()
    Bf = [R(20, 4) for _ in range(4)]
    Af = R(96, 4)
    acc = [R(20, 4) for _ in range(2)]
    A('L_down:')
    A('s_and_b32 s32, s3, 1')
    A('s_lshr_b32 s33, s3, 2')
    A('s_lshl_b32 s33, s33, 1')
    A('s_add_u32 s33, s33, s32')
    A('s_bfe_u32 s34, s3, 0x10001')
    A('s_mul_i32 s40, s71, 48')
    A('s_mul_i32 s41, s33, 12')
    A('s_add_u32 s40, s40, s41')
    A('s_mul_i32 s40, s40, 5120')
    A(f's_add_u32 s40, s40, {WS_WD}')
    A(f'v_add_u32 v{vW2}, 4096, v{VL16}')
    def bloads():
        for j in range(4):
            for F in range(5):
                A(f'buffer_load_dwordx4 {v(Bf[j]+4*F,4)}, v{VL16 if F < 4 else vW2}, {sr(SW)}, s40 offen offset:{1024*(F&3)} {SC1}')
            A('s_add_u32 s40, s40, 5120')
    L = A.label('dn')
    A('s_cmp_eq_u32 s3, 0')
    A(f's_cbranch_scc1 {L}')
    bloads()
    A(f'{L}:')
    A('s_lshl_b32 s42, s70, 1')
    A('s_add_u32 s42, s42, s34')
    A('s_mul_i32 s42, s42, 98304')
    A('s_lshl_b32 s41, s41, 11')
    A('s_add_u32 s42, s42, s41')
    A(f's_add_u32 s42, s42, {WS_ACT}')
    A(f'v_and_b32 v3, 15, v{VL}')
    A(f'v_lshrrev_b32 v4, 4, v{VL}')
    A('v_lshlrev_b32 v5, 9, v4')
    A(f'v_lshl_add_u32 v{vA}, v3, 4, v5')
    A('s_mul_i32 s43, s33, 5120')
    A(f'v_add_u32 v{vB0}, s43, v{VL16}')
    A(f'v_add_u32 v{vB1}, {3*GSTG}, v{vB0}')
    A(f'v_add_u32 v{vB2}, {6*GSTG}, v{vB0}')
    load_ptr_srd(A, SA, 56, 2048*640*2)
    L, L2 = A.label('dn'), A.label('dn')
    A('s_cmp_eq_u32 s3, 0')
    A(f's_cbranch_scc1 {L}')
    A('s_waitcnt vmcnt(20)')
    A(f's_branch {L2}')
    A(f'{L}:')
    A('s_waitcnt vmcnt(0)')
    A(f'{L2}:')
    stamp(A, 4, 4, 5)
    A('s_barrier')
    A(f's_add_u32 s21, s30, {L_H4}')
    A('s_lshr_b32 s22, s70, 1')
    A(f's_add_u32 s22, s22, {L_H4}')
    signal_wait(A, 0, 21, 1, 1, 22, 1, 16, 5)
    stamp(A, 5, 0, 5)
    L = A.label('dn')
    A('s_cmp_lg_u32 s3, 0')
    A(f's_cbranch_scc1 {L}')
    bloads()
    A(f'{L}:')
    for j in range(12):
        if j and j % 2 == 0: A('s_add_u32 s42, s42, 4096')
        for tk in range(2):
            A(f'buffer_load_dwordx4 {v(Af+8*j+4*tk,4)}, v{vA}, {sr(SW)}, s42 offen offset:{2048*(j&1) + 256*tk} {SC1}')
    def breads(j):
        ls = j - 4
        base, o = ((vB0, vB1, vB2)[ls // 3], (ls % 3) * GSTG)
        return [f'ds_read_b128 {v(Bf[j%4]+4*F,4)}, v{base} offset:{o + 1024*F}' for F in range(5)]
    for j in range(12):
        lg = '' if j < 4 else f'lgkmcnt({min(10, 5*(11-j))})'
        A(f's_waitcnt vmcnt({22-2*j}) {lg}')
        ms = [f'v_mfma_f32_16x16x32_bf16 {v(acc[tk]+4*F,4)}, {v(Bf[j%4]+4*F,4)}, {v(Af+8*j+4*tk,4)}, ' + ('0' if j == 0 else v(acc[tk]+4*F,4)) for F in range(5) for tk in range(2)]
        for x in interleave(ms, breads(j+3) if 1 <= j <= 8 else []): A(x)
    stamp(A, 5, 1, 5)
    A('s_barrier')
    A('s_nop 1')
    A('s_cmp_ge_u32 s3, 4')
    A('s_cbranch_scc1 dn_far')
    A('s_xor_b32 s35, s3, 1')
    A('s_mul_i32 s35, s35, 15360')
    A(f'v_add_u32 v5, s35, v{VL16}')
    A('s_cmp_eq_u32 s32, 0')
    A('s_cbranch_scc1 dn_k0')
    for F in range(5): A(f'ds_write_b128 v5, {v(acc[0]+4*F,4)} offset:{1024*F}')
    A('s_waitcnt lgkmcnt(0)')
    for i in range(20): A(f'v_mov_b32 v{acc[0]+i}, v{acc[1]+i}')
    A('s_branch dn_k1')
    A('dn_k0:')
    for F in range(5): A(f'ds_write_b128 v5, {v(acc[1]+4*F,4)} offset:{1024*F}')
    A('dn_k1:')
    Y = acc[0]
    finalize(A, Y, HRES, Af)
    A('s_mul_i32 s35, s3, 15360')
    A(f'v_add_u32 v5, s35, v{VL16}')
    A('v_mul_u32_u24 v6, 1280, v3')
    A('v_lshl_add_u32 v7, v4, 3, v6')
    A('v_lshl_add_u32 v6, v4, 4, v6')
    A('s_waitcnt lgkmcnt(0)')
    A('s_barrier')
    for k in range(3):
        for F in range(5): A(f'ds_read_b128 {v(Bf[k]+4*F,4)}, v5 offset:{5120*k+1024*F}')
    for k in range(3):
        A(f's_waitcnt lgkmcnt({10-5*k})')
        for i in range(0, 20, 2): A(f'v_pk_add_f32 {v(Y+i,2)}, {v(Y+i,2)}, {v(Bf[k]+i,2)}')
    for j in range(10): A(f'v_cvt_pk_bf16_f32 v{HRES+j}, v{Y+2*j}, v{Y+2*j+1}')
    A(f'buffer_store_dwordx4 {v(HRES,4)}, v6, {sr(SA)}, s74 offen')
    A(f'buffer_store_dwordx4 {v(HRES+4,4)}, v6, {sr(SA)}, s74 offen offset:64')
    A(f'buffer_store_dwordx2 {v(HRES+8,2)}, v7, {sr(SA)}, s74 offen offset:128')
    stamp(A, 5, 3, 5)
    A('s_endpgm')
    A('dn_far:')
    A('s_lshl_b32 s35, s34, 1')
    A('s_mul_i32 s35, s35, 15360')
    A('s_sub_u32 s36, s33, 1')
    A('s_mul_i32 s36, s36, 5120')
    A('s_add_u32 s35, s35, s36')
    A(f'v_add_u32 v5, s35, v{VL16}')
    for tk in range(2):
        for F in range(5): A(f'ds_write_b128 v5, {v(acc[tk]+4*F,4)} offset:{15360*tk + 1024*F}')
    A('s_waitcnt lgkmcnt(0)')
    A('s_barrier')
    A('L_done:')
    A('s_endpgm')

def main():
    A = Asm()
    A(kernel_header(NAME + '_kernel'))
    ph_start(A)
    ph_qkv(A)
    XR, slow = ph_att(A)
    ph_wo(A, XR)
    ph_gu(A)
    ph_down(A)
    slow(A)
    A('L_end:')
    hdr = open('cdna_kernels/' + NAME + '.s.ref').read().split('; Override launch')[0]
    out = hdr + f'; @launch grid=(256,1,1) block=(512,1,1) lds={LDS_TOTAL}\n'
    out += '.amdgcn_target "amdgcn-amd-amdhsa--gfx950"\n' + A.text() + kernel_desc(NAME + '_kernel', 256)
    dst = [x for x in sys.argv[1:] if not x.startswith('--')]
    open(dst[0] if dst else 'out2.s', 'w').write(out)

if __name__ == '__main__':
    main()
```

```python
import sys, subprocess
sys.path.insert(0, 'cdna_kernels')
from mb import metadata
def mk(n, kb, flags, amap, width=4, lanes=''):
    st = {4: 'buffer_store_dwordx4 v[12:15]', 2: 'buffer_store_dwordx2 v[12:13]'}[width]
    s = f'''.text
.globl {n}
.p2align 8
.type {n},@function
{n}:
    s_load_dwordx2 s[8:9], s[0:1], 0
    s_load_dwordx2 s[16:17], s[0:1], 8
    s_getreg_b32 s6, hwreg(HW_REG_XCC_ID)
    v_and_b32 v3, 63, v0
    v_lshrrev_b32 v4, 6, v0
    s_nop 0
    v_readfirstlane_b32 s21, v4
    v_lshlrev_b32 v10, {2 + width//2}, v3
    s_waitcnt lgkmcnt(0)
    s_and_b32 s9, s9, 0xffff
    s_mov_b32 s10, 0x100000
    s_mov_b32 s11, 0x20000
    s_and_b32 s17, s17, 0xffff
    s_mov_b32 s18, 0x10000000
    s_mov_b32 s19, 0x20000
    {amap}
    {lanes}
    s_memrealtime s[26:27]
    s_waitcnt lgkmcnt(0)
    s_add_u32 s24, s26, 1024
    s_andn2_b32 s24, s24, 511
{n}_w:
    s_memrealtime s[26:27]
    s_waitcnt lgkmcnt(0)
    s_sub_u32 s28, s26, s24
    s_cmp_lt_i32 s28, 0
    s_cbranch_scc1 {n}_w
'''
    for i in range(kb * 4 // width): s += f'{st}, v10, s[16:19], s22 offen {flags}\n s_add_u32 s22, s22, {256*width}\n'
    s += f'''s_waitcnt vmcnt(0)
    s_memrealtime s[42:43]
    s_waitcnt lgkmcnt(0)
    s_sub_u32 s42, s42, s26
    v_mov_b32 v20, s42
    v_mov_b32 v21, s26
    s_lshl_b32 s3, s2, 5
    v_lshlrev_b32 v1, 3, v4
    buffer_store_dwordx2 v[20:21], v1, s[8:11], s3 offen
    s_waitcnt vmcnt(0)
    s_endpgm
.section .rodata,"a"
.p2align 6
.amdhsa_kernel {n}
  .amdhsa_next_free_vgpr 64
  .amdhsa_next_free_sgpr 102
  .amdhsa_accum_offset 64
  .amdhsa_group_segment_fixed_size 0
  .amdhsa_kernarg_size 16
  .amdhsa_user_sgpr_count 2
  .amdhsa_user_sgpr_kernarg_segment_ptr 1
  .amdhsa_system_sgpr_workgroup_id_x 1
.end_amdhsa_kernel
'''
    return s
def lin(kb): return f's_lshl_b32 s22, s2, 2\n s_add_u32 s22, s22, s21\n s_mul_i32 s22, s22, {kb*1024}'
def pol(p): return f's_lshl_b32 s22, s2, 14\n s_lshr_b32 s23, s22, 21\n s_lshr_b32 s25, s6, 2\n s_xor_b32 s25, s25, s23\n s_xor_b32 s25, s25, {p}\n s_and_b32 s25, s25, 1\n s_lshl_b32 s25, s25, 13\n s_add_u32 s22, s22, s25\n s_lshl_b32 s25, s21, 11\n s_add_u32 s22, s22, s25'
K = {}
il16 = 'v_and_b32 v5, 15, v3\n v_lshlrev_b32 v10, 4, v5\n v_bfe_u32 v5, v3, 4, 1\n v_lshl_add_u32 v10, v5, 3, v10\n v_lshrrev_b32 v5, 5, v3\n v_lshl_add_u32 v10, v5, 8, v10'
il32 = 'v_and_b32 v5, 31, v3\n v_lshlrev_b32 v10, 4, v5\n v_lshrrev_b32 v5, 5, v3\n v_lshl_add_u32 v10, v5, 3, v10'
K['lin8'] = mk('lin8', 8, 'sc1', lin(8))
K['lin8x2'] = mk('lin8x2', 8, 'sc1', lin(8), 2)
K['il16'] = mk('il16', 8, 'sc1', lin(8), 2, il16)
K['il32'] = mk('il32', 8, 'sc1', lin(8), 2, il32)
if len(sys.argv) == 1:
    asm = '.amdgcn_target "amdgcn-amd-amdhsa--gfx950"\n' + ''.join(K.values()) + metadata(list(K), [64]*len(K))
    open('mb17b.s','w').write(asm)
    r = subprocess.run(['clang', '-x', 'assembler', '-target', 'amdgcn-amd-amdhsa', '-mcpu=gfx950', 'mb17b.s', '-o', 'mb17b.co'], capture_output=True, text=True)
    print(r.stderr[:2000])
else:
    import numpy as np, cdna_launch as cl
    o1 = cl.DeviceBuffer(1 << 20); ws = cl.DeviceBuffer(1 << 28); big = cl.DeviceBuffer(1 << 29)
    k0 = cl.AsmKernel('mb17b.co', list(K)[0], check=False)
    for mode in ('fillws', 'fillother', 'none'):
        print(mode)
        for n in K:
            f = k0.function(n); R = []
            for rep in range(8):
                if mode == 'fillws': cl._check(cl._hip.hipMemset(ws._ptr, rep, 1 << 28))
                if mode == 'fillother': cl._check(cl._hip.hipMemset(big._ptr, rep, 1 << 29))
                cl._check(cl._hip.hipDeviceSynchronize())
                cl._launch_function(f, (256,1,1), (256,1,1), cl.pack_ptr_kernargs([o1.ptr, ws.ptr]), 131072)
                cl._check(cl._hip.hipDeviceSynchronize())
                y = o1.to_numpy(np.uint32, (256, 4, 2)).astype(np.int64)
                R.append(y[:, :, 0].max(axis=1) / 100)
            R = np.array(R[1:])
            print('  %-8s med %.2f max(med over reps) %.2f | per xcd med: %s | per xcd max: %s' % (n, np.median(R), np.median(R.max(axis=1)), ' '.join('%.2f' % np.median(R[:, k::8]) for k in range(8)), ' '.join('%.2f' % np.median(R[:, k::8].max(axis=1)) for k in range(8))))
```
